```python
import torch

def _softmax(x, axis=-1):
    return torch.softmax(x, dim=axis)
def _gelu(x):
    return torch.nn.functional.gelu(x, approximate="tanh")
def _silu(x):
    return torch.nn.functional.silu(x)
def _sigmoid(x):
    return torch.sigmoid(x)
def _layernorm(x, axis=-1, eps=1e-5):
    m = x.mean(dim=axis, keepdim=True)
    v = x.var(dim=axis, keepdim=True, unbiased=False)
    return (x - m) / torch.sqrt(v + eps)
def _scatter_add(tgt, idx, src, axis=0):
    return tgt.clone().index_add_(axis, idx, src)
def _segment_sum(src, seg, n):
    out = torch.zeros((n,) + src.shape[1:], dtype=src.dtype)
    return out.index_add_(0, seg, src)
def _pad(x, pw):
    flat = tuple(v for pair in reversed(pw) for v in pair)
    return torch.nn.functional.pad(x, flat)

kernel_name = 'standalone__mha_softmax__sampling'

def setup_inputs():

    _w = (lambda a: (lambda t: t.to(torch.bfloat16) if t.is_floating_point() else t)(torch.as_tensor(a)))
    B, H, Sq, Sk, D = 16, 32, 1, 2048, 128
    return {
        "q": _w((lambda *s: torch.randn(*s, dtype=torch.bfloat16) * 0.8)(B, H, Sq, D)),
        "k": _w((lambda *s: torch.randn(*s, dtype=torch.bfloat16) * 0.8)(B, H, Sk, D)),
        "v": _w((lambda *s: torch.randn(*s, dtype=torch.bfloat16) * 0.05)(B, H, Sk, D)),
    }

def reference(q, k, v):
    scale = q.shape[-1] ** -0.5
    scores = torch.einsum("bhqd,bhkd->bhqk", q, k) * scale
    p = _softmax(scores, axis=-1)
    return torch.einsum("bhqk,bhkd->bhqd", p, v)
```

```python
import sys, math, struct
NAME = "standalone__mha_softmax__sampling"

def gen(RS=8, PL=7, cs=5, cf=6, ctl=0, ck=4, thr=160, thr2=224, pol="nt", lds=98304, stamp=0, P0=0, tailfast=0, last=60, slp=2, prio=0, xf=0, xo=0, qord=0, tn=0, ct=0):
    NW = 4
    if not P0: P0 = min(PL, 7)
    assert PL <= RS and RS % 8 == 0 and cs <= cf <= PL
    T = 1024 // NW
    nit = T // 2 // RS
    TS = NW * 4096
    WIN = (RS // 4) * TS
    NTL = RS // 4
    NP = NW * 4
    SC_BYTES = 16384
    PART = SC_BYTES
    ML = PART + 2*NP*512
    CTL = ML + 2*NP*8
    assert CTL + 32 <= lds
    nthreads = NW*64 + (64 if ctl else 0)
    o = []; A = o.append
    for line in open('cdna_kernels/%s.s.ref' % NAME).read().split('\n'):
        if line.startswith('; @launch'): break
        A(line)
    A("; @launch grid=(256,1,1) block=(%d,1,1) lds=%d" % (nthreads, lds))
    A('.amdgcn_target "amdgcn-amd-amdhsa--gfx950"')
    A('.text'); A('.globl %s_kernel' % NAME); A('.p2align 8'); A('.type %s_kernel,@function' % NAME)
    A('%s_kernel:' % NAME)
    vOFF = 1; vC16 = 2; vSA = 3
    vQ = 4; vQB = 8; vS = 12; vS2 = 16; vACC = 20
    vM = 28; vL = 29; vMA = 30; vMB = 31
    vT = 32
    vPG = 40; vPGA = 41; vMD = 42; vMDA = 43
    vR = 44
    nv = vR + 4*RS
    vF = nv; nv += 21
    vST = nv - 1
    def SL(u): return vR + 4*(u % RS)
    c = (128 ** -0.5) * math.log2(math.e)
    cbits = struct.unpack('<I', struct.pack('<f', c))[0]
    sTO = 36
    A('    s_load_dwordx8 s[4:11], s[0:1], 0')
    if ctl or stamp:
        A('    s_load_dwordx4 s[48:51], s[0:1], 32')
    A('    s_cmp_ge_u32 s2, 256')
    A('    s_cbranch_scc1 L_done')
    if stamp:
        A('    s_memrealtime s[52:53]')
        A('    s_memrealtime s[60:61]')
    A('    v_and_b32 v%d, 63, v0' % vC16)
    A('    v_lshrrev_b32 v%d, 6, v0' % vOFF)
    A('    v_lshlrev_b32 v%d, 4, v%d' % (vC16, vC16))
    A('    v_readfirstlane_b32 s28, v%d' % vOFF)
    A('    v_lshlrev_b32 v%d, %d, v%d' % (vSA, int(math.log2(SC_BYTES//NW)), vOFF))
    A('    v_lshlrev_b32 v%d, 2, v%d' % (vPGA, vOFF))
    A('    v_lshl_add_u32 v%d, v%d, 12, v%d' % (vOFF, vOFF, vC16))
    A('    v_lshrrev_b32 v%d, 8, v%d' % (vT, vC16))
    A('    v_lshl_add_u32 v%d, v%d, 4, v%d' % (vSA, vT, vSA))
    A('    v_and_b32 v%d, 0xf0, v%d' % (vC16, vC16))
    A('    s_lshl_b32 s29, s2, 20')
    A('    s_lshl_b32 s3, s2, 9')
    A('    v_add_u32 v%d, s29, v%d' % (vT, vOFF))
    A('    v_add_u32 v%d, %d, v%d' % (vT+1, TS, vT))
    A('    v_add_u32 v%d, s3, v%d' % (vT+2, vC16))
    A('    v_mov_b32 v%d, 0' % vPG)
    A('    v_mov_b32 v%d, 0' % vMDA)
    A('    s_mov_b32 s33, 0x%08x' % cbits)
    A('    s_mov_b32 s14, %d' % WIN); A('    s_mov_b32 s15, 0x00020000')
    A('    s_mov_b32 s18, %d' % WIN); A('    s_mov_b32 s19, 0x00020000')
    A('    s_mov_b32 s26, 512');      A('    s_mov_b32 s27, 0x00020000')
    for k in range(1, NTL):
        A('    s_mov_b32 s%d, %d' % (sTO+k, k*TS))
    def TO(k): return '0' if k == 0 else 's%d' % (sTO+k)
    A('    s_mov_b32 s35, 1')
    if xf:
        A('    s_mov_b32 s41, %d' % ((xo-1) if xo else 0xffff))
        A('    s_mov_b32 s42, %d' % (xf-1))
    A('    v_mov_b32 v%d, 0xff800000' % vM)
    A('    s_mov_b32 s32, 0')
    A('    s_mov_b64 vcc, 0')
    if xf:
        A('    s_getreg_b32 s40, hwreg(HW_REG_XCC_ID)')
        A('    s_and_b32 s40, s40, 1')
        A('    s_cselect_b32 s40, %d, %d' % ((xo-1) if xo else 63*0+64, xf-1) if False else '    s_cselect_b32 s40, s41, s42')
    if ctl:
        A('    ds_write_b32 v%d, v%d offset:%d' % (vPGA, vPG, CTL))
        A('    s_cmp_eq_u32 s28, %d' % NW)
        A('    s_cbranch_scc1 L_ctl')
    if prio:
        A('    s_cmp_lt_u32 s28, 2'); A('    s_cbranch_scc1 L_np'); A('    s_setprio 1'); A('L_np:')
    A('.p2align 6')
    A('    s_waitcnt lgkmcnt(0)')
    if stamp == 3: A('    s_memrealtime s[62:63]')
    if qord == 0:
        A('    global_load_dwordx4 v[%d:%d], v%d, s[4:5]' % (vQ, vQ+3, vT+2))
        if stamp == 3: A('    s_memrealtime s[84:85]')
    assert P0 <= 8
    for u in range(P0):
        r = SL(u)
        A('    global_load_dwordx4 v[%d:%d], v%d, s[6:7] offset:%d %s' % (r, r+3, vT + u//4, (u % 4)*1024, pol))
        if stamp == 3 and u in (0, 2, 4): A('    s_memrealtime s[%d:%d]' % (86+u, 87+u))
        if qord == u+1:
            A('    global_load_dwordx4 v[%d:%d], v%d, s[4:5]' % (vQ, vQ+3, vT+2))
            if stamp == 3: A('    s_memrealtime s[84:85]')
    A('    global_load_dwordx4 v[%d:%d], v%d, s[4:5] offset:256' % (vQB, vQB+3, vT+2))
    A('    s_add_u32 s12, s6, s29'); A('    s_addc_u32 s13, s7, 0')
    def issue(idx):
        srd = 's[12:15]' if idx < RS else 's[16:19]'
        r = SL(idx); i = idx % RS
        A('    buffer_load_dwordx4 v[%d:%d], v%d, %s, %s offen offset:%d %s' % (r, r+3, vOFF, srd, TO(i//4), (i % 4)*1024, pol))
    A('    s_add_u32 s16, s12, %d' % WIN); A('    s_addc_u32 s17, s13, 0')
    A('    s_add_u32 s30, s8, s29'); A('    s_addc_u32 s31, s9, 0')
    A('    s_add_u32 s24, s10, s3'); A('    s_addc_u32 s25, s11, 0')
    if ctl:
        A('    s_barrier')
    for u in range(P0, PL):
        A('    s_waitcnt vmcnt(%d)' % (cs-1))
        issue(u)
    lab = [0]
    def capissue(idx):
        if cf < PL or True:
            A('    s_waitcnt vmcnt(%d)' % (cf-1))
        if cs < cf:
            lab[0] += 1
            A('    s_cbranch_vccnz L_f%d' % lab[0])
            A('    s_waitcnt vmcnt(%d)' % (cs-1))
            A('L_f%d:' % lab[0])
        issue(idx)
    def advance():
        if stamp == 2:
            A('    s_waitcnt lgkmcnt(0)')
            A('    s_sub_u32 s58, s35, 1')
            A('    s_mov_b32 m0, s58')
            A('    v_writelane_b32 v%d, s60, m0' % vST)
            A('    s_memrealtime s[60:61]')
        A('    s_mov_b64 s[12:13], s[16:17]')
        A('    s_mov_b32 s14, s18')
        A('    s_add_u32 s16, s16, %d' % WIN); A('    s_addc_u32 s17, s17, 0')
        A('    s_add_u32 s35, s35, 1')
        A('    s_cmp_eq_u32 s35, %d' % (2*nit))
        A('    s_cselect_b64 s[16:17], s[30:31], s[16:17]')
        A('    s_cmp_ge_u32 s35, %d' % (4*nit))
        A('    s_cselect_b32 s18, 0, s18')
        if xf:
            A('    s_add_u32 s43, s35, s28')
            A('    s_and_b32 s43, s43, s40')
            A('    s_cselect_b64 vcc, 0, -1')
        if tailfast:
            A('    s_cmp_gt_u32 s35, %d' % (4*nit - tailfast))
            A('    s_cselect_b64 vcc, -1, vcc')
    if stamp == 3: A('    s_memrealtime s[64:65]')
    if qord: A('    s_waitcnt vmcnt(%d)' % (P0 - qord + 1))
    A('L_khead:')
    A('    s_mov_b32 s34, %d' % nit)
    A('L_kloop:')
    if ctl:
        A('    ds_read_b32 v%d, v%d offset:%d' % (vMD, vMDA, CTL+16))
    for u in range(RS):
        A('    s_waitcnt vmcnt(%d)' % (PL-1))
        if stamp == 3: A('    s_memrealtime s[%d:%d]' % (66+2*u, 67+2*u))
        j = u % 4
        for q in range(4):
            A('    v_dot2_f32_bf16 v%d, v%d, v%d, %s' % (vS+j, SL(u)+q, vQ+q, ('0' if q == 0 else 'v%d' % (vS+j))))
        capissue(u + PL)
        if j == 3:
            for r in (8, 4, 2, 1):
                for jj in range(4):
                    A('    v_add_f32_dpp v%d, v%d, v%d row_ror:%d row_mask:0xf bank_mask:0xf' % (vS+jj, vS+jj, vS+jj, r))
            A('    v_max3_f32 v%d, v%d, v%d, v%d' % (vM, vM, vS, vS+1))
            A('    ds_write_b128 v%d, v[%d:%d] offset:%d' % (vSA, vS, vS+3, (u//4)*64))
            A('    v_max3_f32 v%d, v%d, v%d, v%d' % (vM, vM, vS+2, vS+3))
    A('    v_add_u32 v%d, %d, v%d' % (vSA, NTL*64, vSA))
    if ctl:
        A('    v_add_u32 v%d, 1, v%d' % (vPG, vPG))
        if stamp: A('    s_waitcnt lgkmcnt(0)')
        else: A('    s_waitcnt lgkmcnt(%d)' % NTL)
        A('    v_cmp_ne_u32 vcc, 0, v%d' % vMD)
        A('    ds_write_b32 v%d, v%d offset:%d' % (vPGA, vPG, CTL))
    if stamp == 3:
        A('    s_cmp_gt_u32 s35, 4'); A('    s_cbranch_scc1 L_nost')
        A('    s_waitcnt lgkmcnt(0)')
        A('    s_lshl_b32 s58, s35, 3')
        for u in range(RS):
            A('    s_mov_b32 m0, s58'); A('    v_writelane_b32 v%d, s%d, m0' % (vST, 66+2*u)); A('    s_add_u32 s58, s58, 1')
        A('    v_writelane_b32 v%d, s52, 0' % vST); A('    v_writelane_b32 v%d, s62, 1' % vST); A('    v_writelane_b32 v%d, s64, 2' % vST); A('    v_writelane_b32 v%d, s84, 3' % vST); A('    v_writelane_b32 v%d, s86, 4' % vST); A('    v_writelane_b32 v%d, s88, 5' % vST); A('    v_writelane_b32 v%d, s90, 6' % vST)
        A('L_nost:')
    advance()
    A('    s_sub_u32 s34, s34, 1'); A('    s_cmp_lg_u32 s34, 0'); A('    s_cbranch_scc1 L_kloop')
    A('    s_add_u32 s32, s32, 1')
    A('    s_cmp_eq_u32 s32, 2')
    A('    s_cbranch_scc1 L_kdone')
    A('    v_mul_f32 v%d, s33, v%d' % (vMA, vM))
    for q in range(4): A('    v_mov_b32 v%d, v%d' % (vQ+q, vQB+q))
    A('    v_mov_b32 v%d, 0xff800000' % vM)
    A('    s_branch L_khead')
    A('L_kdone:')
    if stamp: A('    s_memrealtime s[54:55]')
    A('    v_mul_f32 v%d, s33, v%d' % (vMB, vM))
    A('    v_subrev_u32 v%d, %d, v%d' % (vSA, SC_BYTES//NW, vSA))
    A('    v_mov_b32 v%d, v%d' % (vM, vMA))
    vPA = vQ; vPM = vQ+1
    A('    v_lshrrev_b32 v%d, 4, v0' % vPM)
    A('    v_lshlrev_b32 v%d, 9, v%d' % (vPA, vPM))
    A('    v_lshl_add_u32 v%d, v%d, 1, v%d' % (vPA, vC16, vPA))
    A('    v_lshlrev_b32 v%d, 3, v%d' % (vPM, vPM))
    A('    ds_read_b128 v[%d:%d], v%d' % (vS, vS+3, vSA))
    A('    s_mov_b32 s32, 0')
    A('    s_mov_b32 s34, %d' % nit)
    A('L_vhead:')
    for i in range(8): A('    v_mov_b32 v%d, 0' % (vACC+i))
    A('    v_mov_b32 v%d, 0' % vL)
    def vbody(label, capped):
        A(label + ':')
        for u in range(RS):
            j = u % 4; t = u // 4
            cur = vS if (t % 2 == 0) else vS2
            nxt = vS2 if (t % 2 == 0) else vS
            if j == 0:
                A('    s_waitcnt lgkmcnt(0)')
                if ctl and t == 1:
                    A('    v_cmp_ne_u32 vcc, 0, v%d' % vMD)
                    if tailfast:
                        A('    s_cmp_gt_u32 s35, %d' % (4*nit - tailfast))
                        A('    s_cselect_b64 vcc, -1, vcc')
                for jj in range(4):
                    A('    v_fma_f32 v%d, v%d, s33, -v%d' % (cur+jj, cur+jj, vM))
                A('    ds_read_b128 v[%d:%d], v%d offset:%d' % (nxt, nxt+3, vSA, (t+1)*64))
                if ctl and t == 0:
                    A('    ds_read_b32 v%d, v%d offset:%d' % (vMD, vMDA, CTL+16))
                    A('    ds_write_b32 v%d, v%d offset:%d' % (vPGA, vPG, CTL))
                    A('    v_add_u32 v%d, 1, v%d' % (vPG, vPG))
                for jj in range(4):
                    A('    v_exp_f32 v%d, v%d' % (cur+jj, cur+jj))
            A('    s_waitcnt vmcnt(%d)' % (PL-1))
            pr = cur + j; pb = pr & ~1; sel = pr & 1
            for q in range(4):
                x = SL(u) + q
                lo, hi = vT + 2*q, vT + 2*q + 1
                A('    v_lshlrev_b32 v%d, 16, v%d' % (lo, x))
                A('    v_and_b32 v%d, 0xffff0000, v%d' % (hi, x))
            if not capped:
                if ct and ct < PL: A('    s_waitcnt vmcnt(%d)' % (ct-1))
                issue(u + PL)
            for q in range(4):
                lo, hi = vT + 2*q, vT + 2*q + 1
                A('    v_pk_fma_f32 v[%d:%d], v[%d:%d], v[%d:%d], v[%d:%d] op_sel:[0,%d,0] op_sel_hi:[1,%d,1]' % (vACC+2*q, vACC+2*q+1, lo, hi, pb, pb+1, vACC+2*q, vACC+2*q+1, sel, sel))
            A('    v_add_f32 v%d, v%d, v%d' % (vL, vL, pr))
            if capped: capissue(u + PL)
        A('    v_add_u32 v%d, %d, v%d' % (vSA, NTL*64, vSA))
        advance()
        A('    s_sub_u32 s34, s34, 1'); A('    s_cmp_lg_u32 s34, 0'); A('    s_cbranch_scc1 ' + label)
    def wpart():
        A('    ds_write_b128 v%d, v[%d:%d] offset:%d' % (vPA, vACC, vACC+3, PART))
        A('    ds_write_b128 v%d, v[%d:%d] offset:%d' % (vPA, vACC+4, vACC+7, PART+16))
        A('    ds_write_b64 v%d, v[%d:%d] offset:%d' % (vPM, vM, vL, ML))
    vbody('L_vloop', True)
    A('    s_cmp_eq_u32 s32, 1')
    A('    s_cbranch_scc1 L_vtail')
    wpart()
    A('    s_mov_b32 s32, 1')
    A('    v_add_u32 v%d, %d, v%d' % (vPA, NP*512, vPA))
    A('    v_add_u32 v%d, %d, v%d' % (vPM, NP*8, vPM))
    A('    v_mov_b32 v%d, v%d' % (vM, vMB))
    A('    s_mov_b32 s34, %d' % (nit - tn))
    A('    s_branch L_vhead')
    A('L_vtail:')
    if tn:
        A('    s_mov_b32 s34, %d' % tn)
        vbody('L_vloop2', False)
    wpart()
    A('L_vdone:')
    if stamp: A('    s_memrealtime s[56:57]')
    vA = vF; vB = vF+1; vML = vF+2
    A('    v_and_b32 v%d, 127, v0' % vA)
    A('    v_lshrrev_b32 v%d, 7, v0' % vB)
    A('    v_lshlrev_b32 v%d, 2, v%d' % (vA, vA))
    A('    v_lshl_add_u32 v%d, v%d, %d, v%d' % (vA, vB, int(math.log2(NP*512)), vA))
    A('    v_lshrrev_b32 v%d, 1, v%d' % (vT, vC16))
    A('    v_lshl_add_u32 v%d, v%d, %d, v%d' % (vB, vB, int(math.log2(NP*8)), vT))
    A('    s_waitcnt lgkmcnt(0)')
    A('    s_barrier')
    A('    ds_read_b64 v[%d:%d], v%d offset:%d' % (vML, vML+1, vB, ML))
    vX = vF + 4
    for i in range(0, NP, 2):
        A('    ds_read2st64_b32 v[%d:%d], v%d offset0:%d offset1:%d' % (vX+i, vX+i+1, vA, PART//256 + 2*i, PART//256 + 2*i + 2))
    if stamp: A('    s_waitcnt lgkmcnt(0)')
    else: A('    s_waitcnt lgkmcnt(%d)' % (NP//2))
    A('    v_mov_b32 v%d, v%d' % (vT, vML))
    A('    s_nop 1')
    for r in (8, 4, 2, 1):
        A('    v_max_f32_dpp v%d, v%d, v%d row_ror:%d row_mask:0xf bank_mask:0xf' % (vT, vT, vT, r))
        A('    s_nop 1')
    A('    v_sub_f32 v%d, v%d, v%d' % (vML, vML, vT))
    A('    v_exp_f32 v%d, v%d' % (vML, vML))
    A('    s_nop 0')
    A('    v_mul_f32 v%d, v%d, v%d' % (vT, vML, vML+1))
    A('    s_nop 1')
    for r in (8, 4, 2, 1):
        A('    v_add_f32_dpp v%d, v%d, v%d row_ror:%d row_mask:0xf bank_mask:0xf' % (vT, vT, vT, r))
        A('    s_nop 1')
    A('    v_rcp_f32 v%d, v%d' % (vT, vT))
    A('    v_mov_b32 v%d, 0' % (vT+1))
    A('    v_mov_b32 v%d, 0' % (vT+2))
    A('    s_waitcnt lgkmcnt(0)')
    for i in range(NP):
        A('    v_fmac_f32_dpp v%d, v%d, v%d row_newbcast:%d row_mask:0xf bank_mask:0xf' % (vT+1+(i % 2), vML, vX+i, i))
    A('    v_add_f32 v%d, v%d, v%d' % (vT+1, vT+1, vT+2))
    A('    v_mul_f32 v%d, v%d, v%d' % (vT+1, vT+1, vT))
    A('    v_cvt_pk_bf16_f32 v%d, v%d, v%d' % (vT+1, vT+1, vT+1))
    A('    v_lshlrev_b32 v%d, 1, v0' % vA)
    A('    buffer_store_short v%d, v%d, s[24:27], 0 offen' % (vT+1, vA))
    if stamp:
        A('    s_memrealtime s[58:59]')
        A('    s_getreg_b32 s47, hwreg(HW_REG_XCC_ID)')
        A('    s_waitcnt lgkmcnt(0)')
        if stamp >= 2:
            A('    s_lshl_b32 s46, s2, %d' % int(math.log2(NW*256)))
            A('    s_add_u32 s46, s46, 0x40000')
            A('    v_lshl_add_u32 v2, v0, 2, s46')
            A('    global_store_dword v2, v%d, s[50:51]' % vST)
            A('    s_lshl_b32 s46, s2, 4')
            A('    s_lshl_b32 s45, s28, 2')
            A('    s_add_u32 s46, s46, s45')
            A('    s_add_u32 s46, s46, 0x3c000')
            A('    v_mov_b32 v2, s46')
            A('    v_mov_b32 v3, s60')
            A('    global_store_dword v2, v3, s[50:51]')
        A('    s_cmp_lg_u32 s28, 0'); A('    s_cbranch_scc1 L_done')
        A('    s_lshl_b32 s46, s2, 5')
        A('    v_mov_b32 v2, s46'); A('    v_mov_b32 v4, s52'); A('    v_mov_b32 v5, s54'); A('    v_mov_b32 v6, s58'); A('    v_mov_b32 v7, s56')
        A('    global_store_dwordx4 v2, v[4:7], s[50:51]')
        A('    v_mov_b32 v8, s47'); A('    v_mov_b32 v9, s47')
        A('    global_store_dwordx2 v2, v[8:9], s[50:51] offset:16')
    A('L_done:')
    A('    s_endpgm')
    if ctl:
        A('L_ctl:')
        A('    s_waitcnt lgkmcnt(0)')
        A('    s_barrier')
        A('    s_mov_b32 s40, %d' % (ck*4))
        A('    s_mov_b32 s41, 0')
        A('    s_mov_b32 s42, -1')
        A('    v_mov_b32 v8, 1')
        A('    s_mov_b64 exec, 1')
        A('L_cpoll:')
        A('    s_sleep %d' % slp)
        A('    ds_read_b128 v[4:7], v%d offset:%d' % (vMDA, CTL))
        A('    s_waitcnt lgkmcnt(0)')
        A('    v_add_u32 v4, v4, v5')
        A('    v_add3_u32 v4, v4, v6, v7')
        A('    s_nop 0')
        A('    v_readfirstlane_b32 s43, v4')
        A('    s_cmp_ge_u32 s43, s42')
        A('    s_cbranch_scc0 L_cnorev')
        A('    ds_write_b32 v%d, v%d offset:%d' % (vMDA, vMDA, CTL+16))
        A('    s_mov_b32 s42, -1')
        A('    s_cmp_gt_u32 s40, %d' % (last*4))
        A('    s_cbranch_scc1 L_cend')
        A('L_cnorev:')
        A('    s_cmp_ge_u32 s43, s40')
        A('    s_cbranch_scc0 L_cpoll')
        A('    s_cmp_gt_u32 s40, %d' % (last*4))
        A('    s_cbranch_scc1 L_cend')
        if ctl == 2:
            A('    v_mov_b32 v9, s41')
            A('    global_atomic_add v10, v9, v8, s[48:49] sc0')
            A('    s_add_u32 s41, s41, 4')
            A('    s_waitcnt vmcnt(0)')
            A('    v_readfirstlane_b32 s44, v10')
        elif ctl == 3:
            A('    s_mov_b32 s44, 0')
        else:
            A('    s_mov_b32 s44, 1')
            A('    s_atomic_add s44, s[48:49], s41 glc')
            A('    s_waitcnt lgkmcnt(0)')
            A('    s_add_u32 s41, s41, 4')
        A('    s_add_u32 s45, s40, %d' % (ck*2))
        A('    s_add_u32 s40, s40, %d' % (ck*4))
        A('    s_cmp_ge_u32 s44, %d' % thr2)
        A('    s_cselect_b32 s42, -1, s45')
        A('    s_cmp_ge_u32 s44, %d' % thr)
        A('    s_cselect_b32 s46, 1, 0')
        A('    s_cselect_b32 s42, s42, -1')
        A('    v_mov_b32 v11, s46')
        A('    ds_write_b32 v%d, v11 offset:%d' % (vMDA, CTL+16))
        A('    s_cmp_gt_u32 s40, %d' % (last*4))
        A('    s_cbranch_scc0 L_cpoll')
        A('    s_cmp_eq_u32 s42, -1')
        A('    s_cbranch_scc0 L_cpoll')
        A('L_cend:')
        A('    s_endpgm')
    A('.section .rodata,"a"'); A('.p2align 6'); A('.amdhsa_kernel %s_kernel' % NAME)
    A('  .amdhsa_next_free_vgpr %d' % nv)
    A('  .amdhsa_next_free_sgpr %d' % (100 if stamp else 64))
    A('  .amdhsa_accum_offset %d' % ((nv+3)//4*4))
    A('  .amdhsa_group_segment_fixed_size 0'); A('  .amdhsa_kernarg_size 48'); A('  .amdhsa_user_sgpr_count 2')
    A('  .amdhsa_user_sgpr_kernarg_segment_ptr 1'); A('  .amdhsa_system_sgpr_workgroup_id_x 1')
    A('  .amdhsa_float_denorm_mode_32 3')
    A('.end_amdhsa_kernel')
    return '\n'.join(o) + '\n'

if __name__ == '__main__':
    import build
    args = []
    for spec in sys.argv[1:]:
        kv = dict(x.split('=') for x in spec.split(','))
        fn = 'g3_' + spec.replace('=', '').replace(',', '_').replace('.', 'p').replace('+', '') + '.s'
        kw = {}
        for k, v in kv.items():
            if k == 'pol': kw[k] = v.replace('+', ' ')
            else: kw[k] = int(v)
        open(fn, 'w').write(gen(**kw))
        args.append(build.build(fn))
    open('args.txt', 'w').write(' '.join(args))
    open('names.txt', 'w').write(' '.join(a.split(':')[0][3:-3] for a in args))
    print(' '.join('"dev/%s",' % a.split(':')[0] for a in args))
```

```python
import sys, math, struct
NAME = "standalone__mha_softmax__sampling"

def gen(RS=8, PL=7, cs=5, cf=6, ctl=0, ck=4, thr=160, thr2=224, pol="nt", lds=98304, stamp=0, P0=0, tailfast=0, last=60, slp=2, prio=0, xf=0, xo=0, qord=0, tn=0, ct=0, al=8, inv=0):
    NW = 4
    if not P0: P0 = min(PL, 7)
    assert PL <= RS and RS % 8 == 0 and cs <= cf <= PL
    T = 1024 // NW
    nit = T // 2 // RS
    TS = NW * 4096
    WIN = (RS // 4) * TS
    NTL = RS // 4
    NP = NW * 4
    SC_BYTES = 16384
    PART = SC_BYTES
    ML = PART + 2*NP*512
    CTL = ML + 2*NP*8
    assert CTL + 32 <= lds
    nthreads = NW*64 + (64 if ctl else 0)
    o = []; A = o.append
    for line in open('cdna_kernels/%s.s.ref' % NAME).read().split('\n'):
        if line.startswith('; @launch'): break
        A(line)
    A("; @launch grid=(256,1,1) block=(%d,1,1) lds=%d" % (nthreads, lds))
    A('.amdgcn_target "amdgcn-amd-amdhsa--gfx950"')
    A('.text'); A('.globl %s_kernel' % NAME); A('.p2align %d' % al); A('.type %s_kernel,@function' % NAME)
    A('%s_kernel:' % NAME)
    vOFF = 1; vC16 = 2; vSA = 3
    vQ = 4; vQB = 8; vS = 12; vS2 = 16; vACC = 20
    vM = 28; vL = 29; vMA = 30; vMB = 31
    vT = 32
    vPG = 40; vPGA = 41; vMD = 42; vMDA = 43
    vR = 44
    nv = vR + 4*RS
    vF = nv; nv += 21
    vST = nv - 1
    def SL(u): return vR + 4*(u % RS)
    c = (128 ** -0.5) * math.log2(math.e)
    cbits = struct.unpack('<I', struct.pack('<f', c))[0]
    sTO = 36
    A('    s_load_dwordx8 s[4:11], s[0:1], 0')
    if ctl or stamp:
        A('    s_load_dwordx4 s[48:51], s[0:1], 32')
    A('    s_cmp_ge_u32 s2, 256')
    A('    s_cbranch_scc1 L_done')
    if stamp:
        A('    s_memrealtime s[52:53]')
        A('    s_memrealtime s[60:61]')
    A('    v_and_b32 v%d, 63, v0' % vC16)
    A('    v_lshrrev_b32 v%d, 6, v0' % vOFF)
    A('    v_lshlrev_b32 v%d, 4, v%d' % (vC16, vC16))
    A('    v_readfirstlane_b32 s28, v%d' % vOFF)
    A('    v_lshlrev_b32 v%d, %d, v%d' % (vSA, int(math.log2(SC_BYTES//NW)), vOFF))
    A('    v_lshlrev_b32 v%d, 2, v%d' % (vPGA, vOFF))
    A('    v_lshl_add_u32 v%d, v%d, 12, v%d' % (vOFF, vOFF, vC16))
    A('    v_lshrrev_b32 v%d, 8, v%d' % (vT, vC16))
    A('    v_lshl_add_u32 v%d, v%d, 4, v%d' % (vSA, vT, vSA))
    A('    v_and_b32 v%d, 0xf0, v%d' % (vC16, vC16))
    A('    s_lshl_b32 s29, s2, 20')
    A('    s_lshl_b32 s3, s2, 9')
    A('    v_add_u32 v%d, s29, v%d' % (vT, vOFF))
    A('    v_add_u32 v%d, %d, v%d' % (vT+1, TS, vT))
    A('    v_add_u32 v%d, s3, v%d' % (vT+2, vC16))
    A('    v_mov_b32 v%d, 0' % vPG)
    A('    v_mov_b32 v%d, 0' % vMDA)
    A('    s_mov_b32 s33, 0x%08x' % cbits)
    A('    s_mov_b32 s14, %d' % WIN); A('    s_mov_b32 s15, 0x00020000')
    A('    s_mov_b32 s18, %d' % WIN); A('    s_mov_b32 s19, 0x00020000')
    A('    s_mov_b32 s26, 512');      A('    s_mov_b32 s27, 0x00020000')
    for k in range(1, NTL):
        A('    s_mov_b32 s%d, %d' % (sTO+k, k*TS))
    def TO(k): return '0' if k == 0 else 's%d' % (sTO+k)
    A('    s_mov_b32 s35, 1')
    if xf:
        A('    s_mov_b32 s41, %d' % ((xo-1) if xo else 0xffff))
        A('    s_mov_b32 s42, %d' % (xf-1))
    A('    v_mov_b32 v%d, 0xff800000' % vM)
    A('    s_mov_b32 s32, 0')
    A('    s_mov_b64 vcc, %d' % (-1 if inv else 0))
    if xf:
        A('    s_getreg_b32 s40, hwreg(HW_REG_XCC_ID)')
        A('    s_and_b32 s40, s40, 1')
        A('    s_cselect_b32 s40, %d, %d' % ((xo-1) if xo else 63*0+64, xf-1) if False else '    s_cselect_b32 s40, s41, s42')
    if ctl:
        A('    ds_write_b32 v%d, v%d offset:%d' % (vPGA, vPG, CTL))
        A('    s_cmp_eq_u32 s28, %d' % NW)
        A('    s_cbranch_scc1 L_ctl')
    if prio:
        A('    s_cmp_lt_u32 s28, 2'); A('    s_cbranch_scc1 L_np'); A('    s_setprio 1'); A('L_np:')
    A('.p2align 6')
    A('    s_waitcnt lgkmcnt(0)')
    if stamp == 3: A('    s_memrealtime s[62:63]')
    if qord == 0:
        A('    global_load_dwordx4 v[%d:%d], v%d, s[4:5]' % (vQ, vQ+3, vT+2))
        if stamp == 3: A('    s_memrealtime s[84:85]')
    assert P0 <= 8
    for u in range(P0):
        r = SL(u)
        A('    global_load_dwordx4 v[%d:%d], v%d, s[6:7] offset:%d %s' % (r, r+3, vT + u//4, (u % 4)*1024, pol))
        if stamp == 3 and u in (0, 2, 4): A('    s_memrealtime s[%d:%d]' % (86+u, 87+u))
        if qord == u+1:
            A('    global_load_dwordx4 v[%d:%d], v%d, s[4:5]' % (vQ, vQ+3, vT+2))
            if stamp == 3: A('    s_memrealtime s[84:85]')
    A('    global_load_dwordx4 v[%d:%d], v%d, s[4:5] offset:256' % (vQB, vQB+3, vT+2))
    A('    s_add_u32 s12, s6, s29'); A('    s_addc_u32 s13, s7, 0')
    def issue(idx):
        srd = 's[12:15]' if idx < RS else 's[16:19]'
        r = SL(idx); i = idx % RS
        A('    buffer_load_dwordx4 v[%d:%d], v%d, %s, %s offen offset:%d %s' % (r, r+3, vOFF, srd, TO(i//4), (i % 4)*1024, pol))
    A('    s_add_u32 s16, s12, %d' % WIN); A('    s_addc_u32 s17, s13, 0')
    A('    s_add_u32 s30, s8, s29'); A('    s_addc_u32 s31, s9, 0')
    A('    s_add_u32 s24, s10, s3'); A('    s_addc_u32 s25, s11, 0')
    if ctl:
        A('    s_barrier')
    for u in range(P0, PL):
        A('    s_waitcnt vmcnt(%d)' % ((cf if inv else cs)-1))
        issue(u)
    lab = [0]
    def capissue(idx):
        if cf < PL or True:
            A('    s_waitcnt vmcnt(%d)' % (cf-1))
        if cs < cf:
            lab[0] += 1
            A('    s_cbranch_vccnz L_f%d' % lab[0])
            A('    s_waitcnt vmcnt(%d)' % (cs-1))
            A('L_f%d:' % lab[0])
        issue(idx)
    def advance():
        if stamp == 2:
            A('    s_waitcnt lgkmcnt(0)')
            A('    s_sub_u32 s58, s35, 1')
            A('    s_mov_b32 m0, s58')
            A('    v_writelane_b32 v%d, s60, m0' % vST)
            A('    s_memrealtime s[60:61]')
        A('    s_mov_b64 s[12:13], s[16:17]')
        A('    s_mov_b32 s14, s18')
        A('    s_add_u32 s16, s16, %d' % WIN); A('    s_addc_u32 s17, s17, 0')
        A('    s_add_u32 s35, s35, 1')
        A('    s_cmp_eq_u32 s35, %d' % (2*nit))
        A('    s_cselect_b64 s[16:17], s[30:31], s[16:17]')
        A('    s_cmp_ge_u32 s35, %d' % (4*nit))
        A('    s_cselect_b32 s18, 0, s18')
        if xf:
            A('    s_add_u32 s43, s35, s28')
            A('    s_and_b32 s43, s43, s40')
            A('    s_cselect_b64 vcc, -1, 0' if inv else '    s_cselect_b64 vcc, 0, -1')
        if tailfast:
            A('    s_cmp_gt_u32 s35, %d' % (4*nit - tailfast))
            A('    s_cselect_b64 vcc, -1, vcc')
    if stamp == 3: A('    s_memrealtime s[64:65]')
    if qord: A('    s_waitcnt vmcnt(%d)' % (P0 - qord + 1))
    A('L_khead:')
    A('    s_mov_b32 s34, %d' % nit)
    A('L_kloop:')
    if ctl:
        A('    ds_read_b32 v%d, v%d offset:%d' % (vMD, vMDA, CTL+16))
    for u in range(RS):
        A('    s_waitcnt vmcnt(%d)' % (PL-1))
        if stamp == 3: A('    s_memrealtime s[%d:%d]' % (66+2*u, 67+2*u))
        j = u % 4
        for q in range(4):
            A('    v_dot2_f32_bf16 v%d, v%d, v%d, %s' % (vS+j, SL(u)+q, vQ+q, ('0' if q == 0 else 'v%d' % (vS+j))))
        capissue(u + PL)
        if j == 3:
            for r in (8, 4, 2, 1):
                for jj in range(4):
                    A('    v_add_f32_dpp v%d, v%d, v%d row_ror:%d row_mask:0xf bank_mask:0xf' % (vS+jj, vS+jj, vS+jj, r))
            A('    v_max3_f32 v%d, v%d, v%d, v%d' % (vM, vM, vS, vS+1))
            A('    ds_write_b128 v%d, v[%d:%d] offset:%d' % (vSA, vS, vS+3, (u//4)*64))
            A('    v_max3_f32 v%d, v%d, v%d, v%d' % (vM, vM, vS+2, vS+3))
    A('    v_add_u32 v%d, %d, v%d' % (vSA, NTL*64, vSA))
    if ctl:
        A('    v_add_u32 v%d, 1, v%d' % (vPG, vPG))
        if stamp: A('    s_waitcnt lgkmcnt(0)')
        else: A('    s_waitcnt lgkmcnt(%d)' % NTL)
        A('    v_cmp_ne_u32 vcc, 0, v%d' % vMD)
        A('    ds_write_b32 v%d, v%d offset:%d' % (vPGA, vPG, CTL))
    if stamp == 3:
        A('    s_cmp_gt_u32 s35, 4'); A('    s_cbranch_scc1 L_nost')
        A('    s_waitcnt lgkmcnt(0)')
        A('    s_lshl_b32 s58, s35, 3')
        for u in range(RS):
            A('    s_mov_b32 m0, s58'); A('    v_writelane_b32 v%d, s%d, m0' % (vST, 66+2*u)); A('    s_add_u32 s58, s58, 1')
        A('    v_writelane_b32 v%d, s52, 0' % vST); A('    v_writelane_b32 v%d, s62, 1' % vST); A('    v_writelane_b32 v%d, s64, 2' % vST); A('    v_writelane_b32 v%d, s84, 3' % vST); A('    v_writelane_b32 v%d, s86, 4' % vST); A('    v_writelane_b32 v%d, s88, 5' % vST); A('    v_writelane_b32 v%d, s90, 6' % vST)
        A('L_nost:')
    advance()
    A('    s_sub_u32 s34, s34, 1'); A('    s_cmp_lg_u32 s34, 0'); A('    s_cbranch_scc1 L_kloop')
    A('    s_add_u32 s32, s32, 1')
    A('    s_cmp_eq_u32 s32, 2')
    A('    s_cbranch_scc1 L_kdone')
    A('    v_mul_f32 v%d, s33, v%d' % (vMA, vM))
    for q in range(4): A('    v_mov_b32 v%d, v%d' % (vQ+q, vQB+q))
    A('    v_mov_b32 v%d, 0xff800000' % vM)
    A('    s_branch L_khead')
    A('L_kdone:')
    if stamp: A('    s_memrealtime s[54:55]')
    A('    v_mul_f32 v%d, s33, v%d' % (vMB, vM))
    A('    v_subrev_u32 v%d, %d, v%d' % (vSA, SC_BYTES//NW, vSA))
    A('    v_mov_b32 v%d, v%d' % (vM, vMA))
    vPA = vQ; vPM = vQ+1
    A('    v_lshrrev_b32 v%d, 4, v0' % vPM)
    A('    v_lshlrev_b32 v%d, 9, v%d' % (vPA, vPM))
    A('    v_lshl_add_u32 v%d, v%d, 1, v%d' % (vPA, vC16, vPA))
    A('    v_lshlrev_b32 v%d, 3, v%d' % (vPM, vPM))
    A('    ds_read_b128 v[%d:%d], v%d' % (vS, vS+3, vSA))
    A('    s_mov_b32 s32, 0')
    A('    s_mov_b32 s34, %d' % nit)
    A('L_vhead:')
    for i in range(8): A('    v_mov_b32 v%d, 0' % (vACC+i))
    A('    v_mov_b32 v%d, 0' % vL)
    def vbody(label, capped):
        A(label + ':')
        for u in range(RS):
            j = u % 4; t = u // 4
            cur = vS if (t % 2 == 0) else vS2
            nxt = vS2 if (t % 2 == 0) else vS
            if j == 0:
                A('    s_waitcnt lgkmcnt(0)')
                if ctl and t == 1:
                    A('    v_cmp_ne_u32 vcc, 0, v%d' % vMD)
                    if tailfast:
                        A('    s_cmp_gt_u32 s35, %d' % (4*nit - tailfast))
                        A('    s_cselect_b64 vcc, -1, vcc')
                for jj in range(4):
                    A('    v_fma_f32 v%d, v%d, s33, -v%d' % (cur+jj, cur+jj, vM))
                A('    ds_read_b128 v[%d:%d], v%d offset:%d' % (nxt, nxt+3, vSA, (t+1)*64))
                if ctl and t == 0:
                    A('    ds_read_b32 v%d, v%d offset:%d' % (vMD, vMDA, CTL+16))
                    A('    ds_write_b32 v%d, v%d offset:%d' % (vPGA, vPG, CTL))
                    A('    v_add_u32 v%d, 1, v%d' % (vPG, vPG))
                for jj in range(4):
                    A('    v_exp_f32 v%d, v%d' % (cur+jj, cur+jj))
            A('    s_waitcnt vmcnt(%d)' % (PL-1))
            pr = cur + j; pb = pr & ~1; sel = pr & 1
            for q in range(4):
                x = SL(u) + q
                lo, hi = vT + 2*q, vT + 2*q + 1
                A('    v_lshlrev_b32 v%d, 16, v%d' % (lo, x))
                A('    v_and_b32 v%d, 0xffff0000, v%d' % (hi, x))
            if not capped:
                if ct and ct < PL: A('    s_waitcnt vmcnt(%d)' % (ct-1))
                issue(u + PL)
            for q in range(4):
                lo, hi = vT + 2*q, vT + 2*q + 1
                A('    v_pk_fma_f32 v[%d:%d], v[%d:%d], v[%d:%d], v[%d:%d] op_sel:[0,%d,0] op_sel_hi:[1,%d,1]' % (vACC+2*q, vACC+2*q+1, lo, hi, pb, pb+1, vACC+2*q, vACC+2*q+1, sel, sel))
            A('    v_add_f32 v%d, v%d, v%d' % (vL, vL, pr))
            if capped: capissue(u + PL)
        A('    v_add_u32 v%d, %d, v%d' % (vSA, NTL*64, vSA))
        advance()
        A('    s_sub_u32 s34, s34, 1'); A('    s_cmp_lg_u32 s34, 0'); A('    s_cbranch_scc1 ' + label)
    def wpart():
        A('    ds_write_b128 v%d, v[%d:%d] offset:%d' % (vPA, vACC, vACC+3, PART))
        A('    ds_write_b128 v%d, v[%d:%d] offset:%d' % (vPA, vACC+4, vACC+7, PART+16))
        A('    ds_write_b64 v%d, v[%d:%d] offset:%d' % (vPM, vM, vL, ML))
    vbody('L_vloop', True)
    A('    s_cmp_eq_u32 s32, 1')
    A('    s_cbranch_scc1 L_vtail')
    wpart()
    A('    s_mov_b32 s32, 1')
    A('    v_add_u32 v%d, %d, v%d' % (vPA, NP*512, vPA))
    A('    v_add_u32 v%d, %d, v%d' % (vPM, NP*8, vPM))
    A('    v_mov_b32 v%d, v%d' % (vM, vMB))
    A('    s_mov_b32 s34, %d' % (nit - tn))
    A('    s_branch L_vhead')
    A('L_vtail:')
    if tn:
        A('    s_mov_b32 s34, %d' % tn)
        vbody('L_vloop2', False)
    wpart()
    A('L_vdone:')
    if stamp: A('    s_memrealtime s[56:57]')
    vA = vF; vB = vF+1; vML = vF+2
    A('    v_and_b32 v%d, 127, v0' % vA)
    A('    v_lshrrev_b32 v%d, 7, v0' % vB)
    A('    v_lshlrev_b32 v%d, 2, v%d' % (vA, vA))
    A('    v_lshl_add_u32 v%d, v%d, %d, v%d' % (vA, vB, int(math.log2(NP*512)), vA))
    A('    v_lshrrev_b32 v%d, 1, v%d' % (vT, vC16))
    A('    v_lshl_add_u32 v%d, v%d, %d, v%d' % (vB, vB, int(math.log2(NP*8)), vT))
    A('    s_waitcnt lgkmcnt(0)')
    A('    s_barrier')
    A('    ds_read_b64 v[%d:%d], v%d offset:%d' % (vML, vML+1, vB, ML))
    vX = vF + 4
    for i in range(0, NP, 2):
        A('    ds_read2st64_b32 v[%d:%d], v%d offset0:%d offset1:%d' % (vX+i, vX+i+1, vA, PART//256 + 2*i, PART//256 + 2*i + 2))
    if stamp: A('    s_waitcnt lgkmcnt(0)')
    else: A('    s_waitcnt lgkmcnt(%d)' % (NP//2))
    A('    v_mov_b32 v%d, v%d' % (vT, vML))
    A('    s_nop 1')
    for r in (8, 4, 2, 1):
        A('    v_max_f32_dpp v%d, v%d, v%d row_ror:%d row_mask:0xf bank_mask:0xf' % (vT, vT, vT, r))
        A('    s_nop 1')
    A('    v_sub_f32 v%d, v%d, v%d' % (vML, vML, vT))
    A('    v_exp_f32 v%d, v%d' % (vML, vML))
    A('    s_nop 0')
    A('    v_mul_f32 v%d, v%d, v%d' % (vT, vML, vML+1))
    A('    s_nop 1')
    for r in (8, 4, 2, 1):
        A('    v_add_f32_dpp v%d, v%d, v%d row_ror:%d row_mask:0xf bank_mask:0xf' % (vT, vT, vT, r))
        A('    s_nop 1')
    A('    v_rcp_f32 v%d, v%d' % (vT, vT))
    A('    v_mov_b32 v%d, 0' % (vT+1))
    A('    v_mov_b32 v%d, 0' % (vT+2))
    A('    s_waitcnt lgkmcnt(0)')
    for i in range(NP):
        A('    v_fmac_f32_dpp v%d, v%d, v%d row_newbcast:%d row_mask:0xf bank_mask:0xf' % (vT+1+(i % 2), vML, vX+i, i))
    A('    v_add_f32 v%d, v%d, v%d' % (vT+1, vT+1, vT+2))
    A('    v_mul_f32 v%d, v%d, v%d' % (vT+1, vT+1, vT))
    A('    v_cvt_pk_bf16_f32 v%d, v%d, v%d' % (vT+1, vT+1, vT+1))
    A('    v_lshlrev_b32 v%d, 1, v0' % vA)
    A('    buffer_store_short v%d, v%d, s[24:27], 0 offen' % (vT+1, vA))
    if stamp:
        A('    s_memrealtime s[58:59]')
        A('    s_getreg_b32 s47, hwreg(HW_REG_XCC_ID)')
        A('    s_waitcnt lgkmcnt(0)')
        if stamp >= 2:
            A('    s_lshl_b32 s46, s2, %d' % int(math.log2(NW*256)))
            A('    s_add_u32 s46, s46, 0x40000')
            A('    v_lshl_add_u32 v2, v0, 2, s46')
            A('    global_store_dword v2, v%d, s[50:51]' % vST)
            A('    s_lshl_b32 s46, s2, 4')
            A('    s_lshl_b32 s45, s28, 2')
            A('    s_add_u32 s46, s46, s45')
            A('    s_add_u32 s46, s46, 0x3c000')
            A('    v_mov_b32 v2, s46')
            A('    v_mov_b32 v3, s60')
            A('    global_store_dword v2, v3, s[50:51]')
        A('    s_cmp_lg_u32 s28, 0'); A('    s_cbranch_scc1 L_done')
        A('    s_lshl_b32 s46, s2, 5')
        A('    v_mov_b32 v2, s46'); A('    v_mov_b32 v4, s52'); A('    v_mov_b32 v5, s54'); A('    v_mov_b32 v6, s58'); A('    v_mov_b32 v7, s56')
        A('    global_store_dwordx4 v2, v[4:7], s[50:51]')
        A('    v_mov_b32 v8, s47'); A('    v_mov_b32 v9, s47')
        A('    global_store_dwordx2 v2, v[8:9], s[50:51] offset:16')
    A('L_done:')
    A('    s_endpgm')
    if ctl:
        A('L_ctl:')
        A('    s_waitcnt lgkmcnt(0)')
        A('    s_barrier')
        A('    s_mov_b32 s40, %d' % (ck*4))
        A('    s_mov_b32 s41, 0')
        A('    s_mov_b32 s42, -1')
        A('    v_mov_b32 v8, 1')
        A('    s_mov_b64 exec, 1')
        A('L_cpoll:')
        A('    s_sleep %d' % slp)
        A('    ds_read_b128 v[4:7], v%d offset:%d' % (vMDA, CTL))
        A('    s_waitcnt lgkmcnt(0)')
        A('    v_add_u32 v4, v4, v5')
        A('    v_add3_u32 v4, v4, v6, v7')
        A('    s_nop 0')
        A('    v_readfirstlane_b32 s43, v4')
        A('    s_cmp_ge_u32 s43, s42')
        A('    s_cbranch_scc0 L_cnorev')
        A('    ds_write_b32 v%d, v%d offset:%d' % (vMDA, vMDA, CTL+16))
        A('    s_mov_b32 s42, -1')
        A('    s_cmp_gt_u32 s40, %d' % (last*4))
        A('    s_cbranch_scc1 L_cend')
        A('L_cnorev:')
        A('    s_cmp_ge_u32 s43, s40')
        A('    s_cbranch_scc0 L_cpoll')
        A('    s_cmp_gt_u32 s40, %d' % (last*4))
        A('    s_cbranch_scc1 L_cend')
        if ctl == 2:
            A('    v_mov_b32 v9, s41')
            A('    global_atomic_add v10, v9, v8, s[48:49] sc0')
            A('    s_add_u32 s41, s41, 4')
            A('    s_waitcnt vmcnt(0)')
            A('    v_readfirstlane_b32 s44, v10')
        elif ctl == 3:
            A('    s_mov_b32 s44, 0')
        else:
            A('    s_mov_b32 s44, 1')
            A('    s_atomic_add s44, s[48:49], s41 glc')
            A('    s_waitcnt lgkmcnt(0)')
            A('    s_add_u32 s41, s41, 4')
        A('    s_add_u32 s45, s40, %d' % (ck*2))
        A('    s_add_u32 s40, s40, %d' % (ck*4))
        A('    s_cmp_ge_u32 s44, %d' % thr2)
        A('    s_cselect_b32 s42, -1, s45')
        A('    s_cmp_ge_u32 s44, %d' % thr)
        A('    s_cselect_b32 s46, 1, 0')
        A('    s_cselect_b32 s42, s42, -1')
        A('    v_mov_b32 v11, s46')
        A('    ds_write_b32 v%d, v11 offset:%d' % (vMDA, CTL+16))
        A('    s_cmp_gt_u32 s40, %d' % (last*4))
        A('    s_cbranch_scc0 L_cpoll')
        A('    s_cmp_eq_u32 s42, -1')
        A('    s_cbranch_scc0 L_cpoll')
        A('L_cend:')
        A('    s_endpgm')
    A('.section .rodata,"a"'); A('.p2align 6'); A('.amdhsa_kernel %s_kernel' % NAME)
    A('  .amdhsa_next_free_vgpr %d' % nv)
    A('  .amdhsa_next_free_sgpr %d' % (100 if stamp else 64))
    A('  .amdhsa_accum_offset %d' % ((nv+3)//4*4))
    A('  .amdhsa_group_segment_fixed_size 0'); A('  .amdhsa_kernarg_size 48'); A('  .amdhsa_user_sgpr_count 2')
    A('  .amdhsa_user_sgpr_kernarg_segment_ptr 1'); A('  .amdhsa_system_sgpr_workgroup_id_x 1')
    A('  .amdhsa_float_denorm_mode_32 3')
    A('.end_amdhsa_kernel')
    return '\n'.join(o) + '\n'

if __name__ == '__main__':
    import build
    args = []
    for spec in sys.argv[1:]:
        kv = dict(x.split('=') for x in spec.split(','))
        fn = 'g3_' + spec.replace('=', '').replace(',', '_').replace('.', 'p').replace('+', '') + '.s'
        kw = {}
        for k, v in kv.items():
            if k == 'pol': kw[k] = v.replace('+', ' ')
            else: kw[k] = int(v)
        open(fn, 'w').write(gen(**kw))
        args.append(build.build(fn))
    open('args.txt', 'w').write(' '.join(args))
    open('names.txt', 'w').write(' '.join(a.split(':')[0][3:-3] for a in args))
    print(' '.join('"dev/%s",' % a.split(':')[0] for a in args))
```

```python
import sys, math, struct
NAME = "standalone__mha_softmax__sampling"

def gen(RS=8, PL=7, cs=5, cf=6, ctl=0, ck=4, thr=160, thr2=224, pol="nt", lds=98304, stamp=0, P0=0, tailfast=0, last=60, slp=2, prio=0, xf=0, xo=0, qord=0, tn=0, ct=0, al=8, inv=0, th1=25, th2=50, th3=90, n1=1, n2=2, n3=4, dly=2, first=1, nost=0, nold=0, lpol='sc1', spol='sc0 sc1', sld=0):
    NW = 4
    if not P0: P0 = min(PL, 7)
    assert PL <= RS and RS % 8 == 0 and cs <= cf <= PL
    T = 1024 // NW
    nit = T // 2 // RS
    TS = NW * 4096
    WIN = (RS // 4) * TS
    NTL = RS // 4
    NP = NW * 4
    SC_BYTES = 16384
    PART = SC_BYTES
    ML = PART + 2*NP*512
    CTL = ML + 2*NP*8
    assert CTL + 32 <= lds
    nthreads = NW*64 + (64 if ctl else 0)
    o = []; A = o.append
    for line in open('cdna_kernels/%s.s.ref' % NAME).read().split('\n'):
        if line.startswith('; @launch'): break
        A(line)
    A("; @launch grid=(256,1,1) block=(%d,1,1) lds=%d" % (nthreads, lds))
    A('.amdgcn_target "amdgcn-amd-amdhsa--gfx950"')
    A('.text'); A('.globl %s_kernel' % NAME); A('.p2align %d' % al); A('.type %s_kernel,@function' % NAME)
    A('%s_kernel:' % NAME)
    vOFF = 1; vC16 = 2; vSA = 3
    vQ = 4; vQB = 8; vS = 12; vS2 = 16; vACC = 20
    vM = 28; vL = 29; vMA = 30; vMB = 31
    vT = 32
    vPG = 40; vPGA = 41; vMD = 42; vMDA = 43
    vR = 44
    nv = vR + 4*RS
    vF = nv; nv += 21
    vST = nv - 1
    def SL(u): return vR + 4*(u % RS)
    c = (128 ** -0.5) * math.log2(math.e)
    cbits = struct.unpack('<I', struct.pack('<f', c))[0]
    sTO = 36
    A('    s_load_dwordx8 s[4:11], s[0:1], 0')
    if ctl or stamp:
        A('    s_load_dwordx4 s[48:51], s[0:1], 32')
    A('    s_cmp_ge_u32 s2, 256')
    A('    s_cbranch_scc1 L_done')
    if stamp:
        A('    s_memrealtime s[52:53]')
        A('    s_memrealtime s[60:61]')
    A('    v_and_b32 v%d, 63, v0' % vC16)
    A('    v_lshrrev_b32 v%d, 6, v0' % vOFF)
    A('    v_lshlrev_b32 v%d, 4, v%d' % (vC16, vC16))
    A('    v_readfirstlane_b32 s28, v%d' % vOFF)
    A('    v_lshlrev_b32 v%d, %d, v%d' % (vSA, int(math.log2(SC_BYTES//NW)), vOFF))
    A('    v_lshlrev_b32 v%d, 2, v%d' % (vPGA, vOFF))
    A('    v_lshl_add_u32 v%d, v%d, 12, v%d' % (vOFF, vOFF, vC16))
    A('    v_lshrrev_b32 v%d, 8, v%d' % (vT, vC16))
    A('    v_lshl_add_u32 v%d, v%d, 4, v%d' % (vSA, vT, vSA))
    A('    v_and_b32 v%d, 0xf0, v%d' % (vC16, vC16))
    A('    s_lshl_b32 s29, s2, 20')
    A('    s_lshl_b32 s3, s2, 9')
    A('    v_add_u32 v%d, s29, v%d' % (vT, vOFF))
    A('    v_add_u32 v%d, %d, v%d' % (vT+1, TS, vT))
    A('    v_add_u32 v%d, s3, v%d' % (vT+2, vC16))
    A('    v_mov_b32 v%d, 0' % vPG)
    A('    v_mov_b32 v%d, 0' % vMDA)
    A('    s_mov_b32 s33, 0x%08x' % cbits)
    A('    s_mov_b32 s14, %d' % WIN); A('    s_mov_b32 s15, 0x00020000')
    A('    s_mov_b32 s18, %d' % WIN); A('    s_mov_b32 s19, 0x00020000')
    A('    s_mov_b32 s26, 512');      A('    s_mov_b32 s27, 0x00020000')
    for k in range(1, NTL):
        A('    s_mov_b32 s%d, %d' % (sTO+k, k*TS))
    def TO(k): return '0' if k == 0 else 's%d' % (sTO+k)
    A('    s_mov_b32 s35, 1')
    if xf:
        A('    s_mov_b32 s41, %d' % ((xo-1) if xo else 0xffff))
        A('    s_mov_b32 s42, %d' % (xf-1))
    A('    v_mov_b32 v%d, 0xff800000' % vM)
    A('    s_mov_b32 s32, 0')
    A('    s_mov_b64 vcc, %d' % (-1 if inv else 0))
    if xf:
        A('    s_getreg_b32 s40, hwreg(HW_REG_XCC_ID)')
        A('    s_and_b32 s40, s40, 1')
        A('    s_cselect_b32 s40, %d, %d' % ((xo-1) if xo else 63*0+64, xf-1) if False else '    s_cselect_b32 s40, s41, s42')
    if ctl:
        A('    ds_write_b32 v%d, v%d offset:%d' % (vPGA, vPG, CTL))
        A('    s_cmp_eq_u32 s28, %d' % NW)
        A('    s_cbranch_scc1 L_ctl')
    if prio:
        A('    s_cmp_lt_u32 s28, 2'); A('    s_cbranch_scc1 L_np'); A('    s_setprio 1'); A('L_np:')
    A('.p2align 6')
    A('    s_waitcnt lgkmcnt(0)')
    if stamp == 3: A('    s_memrealtime s[62:63]')
    if qord == 0:
        A('    global_load_dwordx4 v[%d:%d], v%d, s[4:5]' % (vQ, vQ+3, vT+2))
        if stamp == 3: A('    s_memrealtime s[84:85]')
    assert P0 <= 8
    for u in range(P0):
        r = SL(u)
        A('    global_load_dwordx4 v[%d:%d], v%d, s[6:7] offset:%d %s' % (r, r+3, vT + u//4, (u % 4)*1024, pol))
        if stamp == 3 and u in (0, 2, 4): A('    s_memrealtime s[%d:%d]' % (86+u, 87+u))
        if qord == u+1:
            A('    global_load_dwordx4 v[%d:%d], v%d, s[4:5]' % (vQ, vQ+3, vT+2))
            if stamp == 3: A('    s_memrealtime s[84:85]')
    A('    global_load_dwordx4 v[%d:%d], v%d, s[4:5] offset:256' % (vQB, vQB+3, vT+2))
    A('    s_add_u32 s12, s6, s29'); A('    s_addc_u32 s13, s7, 0')
    def issue(idx):
        srd = 's[12:15]' if idx < RS else 's[16:19]'
        r = SL(idx); i = idx % RS
        A('    buffer_load_dwordx4 v[%d:%d], v%d, %s, %s offen offset:%d %s' % (r, r+3, vOFF, srd, TO(i//4), (i % 4)*1024, pol))
    A('    s_add_u32 s16, s12, %d' % WIN); A('    s_addc_u32 s17, s13, 0')
    A('    s_add_u32 s30, s8, s29'); A('    s_addc_u32 s31, s9, 0')
    A('    s_add_u32 s24, s10, s3'); A('    s_addc_u32 s25, s11, 0')
    if ctl:
        A('    s_barrier')
    for u in range(P0, PL):
        A('    s_waitcnt vmcnt(%d)' % ((cf if inv else cs)-1))
        issue(u)
    lab = [0]
    def capissue(idx):
        if cf < PL or True:
            A('    s_waitcnt vmcnt(%d)' % (cf-1))
        if cs < cf:
            lab[0] += 1
            A('    s_cbranch_vccnz L_f%d' % lab[0])
            A('    s_waitcnt vmcnt(%d)' % (cs-1))
            A('L_f%d:' % lab[0])
        issue(idx)
    def advance():
        if stamp == 2:
            A('    s_waitcnt lgkmcnt(0)')
            A('    s_sub_u32 s58, s35, 1')
            A('    s_mov_b32 m0, s58')
            A('    v_writelane_b32 v%d, s60, m0' % vST)
            A('    s_memrealtime s[60:61]')
        A('    s_mov_b64 s[12:13], s[16:17]')
        A('    s_mov_b32 s14, s18')
        A('    s_add_u32 s16, s16, %d' % WIN); A('    s_addc_u32 s17, s17, 0')
        A('    s_add_u32 s35, s35, 1')
        A('    s_cmp_eq_u32 s35, %d' % (2*nit))
        A('    s_cselect_b64 s[16:17], s[30:31], s[16:17]')
        A('    s_cmp_ge_u32 s35, %d' % (4*nit))
        A('    s_cselect_b32 s18, 0, s18')
        if xf:
            A('    s_add_u32 s43, s35, s28')
            A('    s_and_b32 s43, s43, s40')
            A('    s_cselect_b64 vcc, -1, 0' if inv else '    s_cselect_b64 vcc, 0, -1')
        if tailfast:
            A('    s_cmp_gt_u32 s35, %d' % (4*nit - tailfast))
            A('    s_cselect_b64 vcc, -1, vcc')
    if stamp == 3: A('    s_memrealtime s[64:65]')
    if qord: A('    s_waitcnt vmcnt(%d)' % (P0 - qord + 1))
    A('L_khead:')
    A('    s_mov_b32 s34, %d' % nit)
    A('L_kloop:')
    if ctl:
        A('    ds_read_b32 v%d, v%d offset:%d' % (vMD, vMDA, CTL+16))
    for u in range(RS):
        A('    s_waitcnt vmcnt(%d)' % (PL-1))
        if stamp == 3: A('    s_memrealtime s[%d:%d]' % (66+2*u, 67+2*u))
        j = u % 4
        for q in range(4):
            A('    v_dot2_f32_bf16 v%d, v%d, v%d, %s' % (vS+j, SL(u)+q, vQ+q, ('0' if q == 0 else 'v%d' % (vS+j))))
        capissue(u + PL)
        if j == 3:
            for r in (8, 4, 2, 1):
                for jj in range(4):
                    A('    v_add_f32_dpp v%d, v%d, v%d row_ror:%d row_mask:0xf bank_mask:0xf' % (vS+jj, vS+jj, vS+jj, r))
            A('    v_max3_f32 v%d, v%d, v%d, v%d' % (vM, vM, vS, vS+1))
            A('    ds_write_b128 v%d, v[%d:%d] offset:%d' % (vSA, vS, vS+3, (u//4)*64))
            A('    v_max3_f32 v%d, v%d, v%d, v%d' % (vM, vM, vS+2, vS+3))
    A('    v_add_u32 v%d, %d, v%d' % (vSA, NTL*64, vSA))
    if ctl:
        A('    v_add_u32 v%d, 1, v%d' % (vPG, vPG))
        if stamp: A('    s_waitcnt lgkmcnt(0)')
        else: A('    s_waitcnt lgkmcnt(%d)' % NTL)
        A('    v_cmp_ne_u32 vcc, 0, v%d' % vMD)
        A('    ds_write_b32 v%d, v%d offset:%d' % (vPGA, vPG, CTL))
    if stamp == 3:
        A('    s_cmp_gt_u32 s35, 4'); A('    s_cbranch_scc1 L_nost')
        A('    s_waitcnt lgkmcnt(0)')
        A('    s_lshl_b32 s58, s35, 3')
        for u in range(RS):
            A('    s_mov_b32 m0, s58'); A('    v_writelane_b32 v%d, s%d, m0' % (vST, 66+2*u)); A('    s_add_u32 s58, s58, 1')
        A('    v_writelane_b32 v%d, s52, 0' % vST); A('    v_writelane_b32 v%d, s62, 1' % vST); A('    v_writelane_b32 v%d, s64, 2' % vST); A('    v_writelane_b32 v%d, s84, 3' % vST); A('    v_writelane_b32 v%d, s86, 4' % vST); A('    v_writelane_b32 v%d, s88, 5' % vST); A('    v_writelane_b32 v%d, s90, 6' % vST)
        A('L_nost:')
    advance()
    A('    s_sub_u32 s34, s34, 1'); A('    s_cmp_lg_u32 s34, 0'); A('    s_cbranch_scc1 L_kloop')
    A('    s_add_u32 s32, s32, 1')
    A('    s_cmp_eq_u32 s32, 2')
    A('    s_cbranch_scc1 L_kdone')
    A('    v_mul_f32 v%d, s33, v%d' % (vMA, vM))
    for q in range(4): A('    v_mov_b32 v%d, v%d' % (vQ+q, vQB+q))
    A('    v_mov_b32 v%d, 0xff800000' % vM)
    A('    s_branch L_khead')
    A('L_kdone:')
    if stamp: A('    s_memrealtime s[54:55]')
    A('    v_mul_f32 v%d, s33, v%d' % (vMB, vM))
    A('    v_subrev_u32 v%d, %d, v%d' % (vSA, SC_BYTES//NW, vSA))
    A('    v_mov_b32 v%d, v%d' % (vM, vMA))
    vPA = vQ; vPM = vQ+1
    A('    v_lshrrev_b32 v%d, 4, v0' % vPM)
    A('    v_lshlrev_b32 v%d, 9, v%d' % (vPA, vPM))
    A('    v_lshl_add_u32 v%d, v%d, 1, v%d' % (vPA, vC16, vPA))
    A('    v_lshlrev_b32 v%d, 3, v%d' % (vPM, vPM))
    A('    ds_read_b128 v[%d:%d], v%d' % (vS, vS+3, vSA))
    A('    s_mov_b32 s32, 0')
    A('    s_mov_b32 s34, %d' % nit)
    A('L_vhead:')
    for i in range(8): A('    v_mov_b32 v%d, 0' % (vACC+i))
    A('    v_mov_b32 v%d, 0' % vL)
    def vbody(label, capped):
        A(label + ':')
        for u in range(RS):
            j = u % 4; t = u // 4
            cur = vS if (t % 2 == 0) else vS2
            nxt = vS2 if (t % 2 == 0) else vS
            if j == 0:
                A('    s_waitcnt lgkmcnt(0)')
                if ctl and t == 1:
                    A('    v_cmp_ne_u32 vcc, 0, v%d' % vMD)
                    if tailfast:
                        A('    s_cmp_gt_u32 s35, %d' % (4*nit - tailfast))
                        A('    s_cselect_b64 vcc, -1, vcc')
                for jj in range(4):
                    A('    v_fma_f32 v%d, v%d, s33, -v%d' % (cur+jj, cur+jj, vM))
                A('    ds_read_b128 v[%d:%d], v%d offset:%d' % (nxt, nxt+3, vSA, (t+1)*64))
                if ctl and t == 0:
                    A('    ds_read_b32 v%d, v%d offset:%d' % (vMD, vMDA, CTL+16))
                    A('    ds_write_b32 v%d, v%d offset:%d' % (vPGA, vPG, CTL))
                    A('    v_add_u32 v%d, 1, v%d' % (vPG, vPG))
                for jj in range(4):
                    A('    v_exp_f32 v%d, v%d' % (cur+jj, cur+jj))
            A('    s_waitcnt vmcnt(%d)' % (PL-1))
            pr = cur + j; pb = pr & ~1; sel = pr & 1
            for q in range(4):
                x = SL(u) + q
                lo, hi = vT + 2*q, vT + 2*q + 1
                A('    v_lshlrev_b32 v%d, 16, v%d' % (lo, x))
                A('    v_and_b32 v%d, 0xffff0000, v%d' % (hi, x))
            if not capped:
                if ct and ct < PL: A('    s_waitcnt vmcnt(%d)' % (ct-1))
                issue(u + PL)
            for q in range(4):
                lo, hi = vT + 2*q, vT + 2*q + 1
                A('    v_pk_fma_f32 v[%d:%d], v[%d:%d], v[%d:%d], v[%d:%d] op_sel:[0,%d,0] op_sel_hi:[1,%d,1]' % (vACC+2*q, vACC+2*q+1, lo, hi, pb, pb+1, vACC+2*q, vACC+2*q+1, sel, sel))
            A('    v_add_f32 v%d, v%d, v%d' % (vL, vL, pr))
            if capped: capissue(u + PL)
        A('    v_add_u32 v%d, %d, v%d' % (vSA, NTL*64, vSA))
        advance()
        A('    s_sub_u32 s34, s34, 1'); A('    s_cmp_lg_u32 s34, 0'); A('    s_cbranch_scc1 ' + label)
    def wpart():
        A('    ds_write_b128 v%d, v[%d:%d] offset:%d' % (vPA, vACC, vACC+3, PART))
        A('    ds_write_b128 v%d, v[%d:%d] offset:%d' % (vPA, vACC+4, vACC+7, PART+16))
        A('    ds_write_b64 v%d, v[%d:%d] offset:%d' % (vPM, vM, vL, ML))
    vbody('L_vloop', True)
    A('    s_cmp_eq_u32 s32, 1')
    A('    s_cbranch_scc1 L_vtail')
    wpart()
    A('    s_mov_b32 s32, 1')
    A('    v_add_u32 v%d, %d, v%d' % (vPA, NP*512, vPA))
    A('    v_add_u32 v%d, %d, v%d' % (vPM, NP*8, vPM))
    A('    v_mov_b32 v%d, v%d' % (vM, vMB))
    A('    s_mov_b32 s34, %d' % (nit - tn))
    A('    s_branch L_vhead')
    A('L_vtail:')
    if tn:
        A('    s_mov_b32 s34, %d' % tn)
        vbody('L_vloop2', False)
    wpart()
    A('L_vdone:')
    if stamp: A('    s_memrealtime s[56:57]')
    vA = vF; vB = vF+1; vML = vF+2
    A('    v_and_b32 v%d, 127, v0' % vA)
    A('    v_lshrrev_b32 v%d, 7, v0' % vB)
    A('    v_lshlrev_b32 v%d, 2, v%d' % (vA, vA))
    A('    v_lshl_add_u32 v%d, v%d, %d, v%d' % (vA, vB, int(math.log2(NP*512)), vA))
    A('    v_lshrrev_b32 v%d, 1, v%d' % (vT, vC16))
    A('    v_lshl_add_u32 v%d, v%d, %d, v%d' % (vB, vB, int(math.log2(NP*8)), vT))
    A('    s_waitcnt lgkmcnt(0)')
    A('    s_barrier')
    A('    ds_read_b64 v[%d:%d], v%d offset:%d' % (vML, vML+1, vB, ML))
    vX = vF + 4
    for i in range(0, NP, 2):
        A('    ds_read2st64_b32 v[%d:%d], v%d offset0:%d offset1:%d' % (vX+i, vX+i+1, vA, PART//256 + 2*i, PART//256 + 2*i + 2))
    if stamp: A('    s_waitcnt lgkmcnt(0)')
    else: A('    s_waitcnt lgkmcnt(%d)' % (NP//2))
    A('    v_mov_b32 v%d, v%d' % (vT, vML))
    A('    s_nop 1')
    for r in (8, 4, 2, 1):
        A('    v_max_f32_dpp v%d, v%d, v%d row_ror:%d row_mask:0xf bank_mask:0xf' % (vT, vT, vT, r))
        A('    s_nop 1')
    A('    v_sub_f32 v%d, v%d, v%d' % (vML, vML, vT))
    A('    v_exp_f32 v%d, v%d' % (vML, vML))
    A('    s_nop 0')
    A('    v_mul_f32 v%d, v%d, v%d' % (vT, vML, vML+1))
    A('    s_nop 1')
    for r in (8, 4, 2, 1):
        A('    v_add_f32_dpp v%d, v%d, v%d row_ror:%d row_mask:0xf bank_mask:0xf' % (vT, vT, vT, r))
        A('    s_nop 1')
    A('    v_rcp_f32 v%d, v%d' % (vT, vT))
    A('    v_mov_b32 v%d, 0' % (vT+1))
    A('    v_mov_b32 v%d, 0' % (vT+2))
    A('    s_waitcnt lgkmcnt(0)')
    for i in range(NP):
        A('    v_fmac_f32_dpp v%d, v%d, v%d row_newbcast:%d row_mask:0xf bank_mask:0xf' % (vT+1+(i % 2), vML, vX+i, i))
    A('    v_add_f32 v%d, v%d, v%d' % (vT+1, vT+1, vT+2))
    A('    v_mul_f32 v%d, v%d, v%d' % (vT+1, vT+1, vT))
    A('    v_cvt_pk_bf16_f32 v%d, v%d, v%d' % (vT+1, vT+1, vT+1))
    A('    v_lshlrev_b32 v%d, 1, v0' % vA)
    A('    buffer_store_short v%d, v%d, s[24:27], 0 offen' % (vT+1, vA))
    if stamp:
        A('    s_memrealtime s[58:59]')
        A('    s_getreg_b32 s47, hwreg(HW_REG_XCC_ID)')
        A('    s_waitcnt lgkmcnt(0)')
        if stamp >= 2:
            A('    s_lshl_b32 s46, s2, %d' % int(math.log2(NW*256)))
            A('    s_add_u32 s46, s46, 0x40000')
            A('    v_lshl_add_u32 v2, v0, 2, s46')
            A('    global_store_dword v2, v%d, s[50:51]' % vST)
            A('    s_lshl_b32 s46, s2, 4')
            A('    s_lshl_b32 s45, s28, 2')
            A('    s_add_u32 s46, s46, s45')
            A('    s_add_u32 s46, s46, 0x3c000')
            A('    v_mov_b32 v2, s46')
            A('    v_mov_b32 v3, s60')
            A('    global_store_dword v2, v3, s[50:51]')
        A('    s_cmp_lg_u32 s28, 0'); A('    s_cbranch_scc1 L_done')
        A('    s_lshl_b32 s46, s2, 5')
        A('    v_mov_b32 v2, s46'); A('    v_mov_b32 v4, s52'); A('    v_mov_b32 v5, s54'); A('    v_mov_b32 v6, s58'); A('    v_mov_b32 v7, s56')
        A('    global_store_dwordx4 v2, v[4:7], s[50:51]')
        A('    v_mov_b32 v8, s47'); A('    v_mov_b32 v9, s47')
        A('    global_store_dwordx2 v2, v[8:9], s[50:51] offset:16')
    A('L_done:')
    A('    s_endpgm')
    if ctl == 7:
        A('L_ctl:')
        A('    s_memrealtime s[52:53]')
        A('    s_waitcnt lgkmcnt(0)')
        A('    s_barrier')
        A('    s_mov_b32 s40, %d' % (ck*4*first))
        A('    s_mov_b32 s41, 0x100000')
        A('    s_mov_b32 s42, -1')
        A('    v_and_b32 v12, 15, v0')
        A('    v_lshlrev_b32 v12, 8, v12')
        A('    s_and_b32 s46, s2, 7')
        A('    s_lshr_b32 s39, s2, 7')
        A('    s_lshl_b32 s39, s39, 3')
        A('    s_or_b32 s39, s39, s46')
        A('    s_lshl_b32 s39, s39, 8')
        A('    s_and_b32 s47, s2, 0x%x' % (0xf8 if sld == 8 else 0x78))
        def poll(label, thr_sgpr):
            A(label + ':')
            A('    s_sleep %d' % slp)
            A('    ds_read_b128 v[4:7], v%d offset:%d' % (vMDA, CTL))
            A('    s_waitcnt lgkmcnt(0)')
            A('    v_add_u32 v4, v4, v5')
            A('    v_add3_u32 v4, v4, v6, v7')
            A('    s_nop 0')
            A('    v_readfirstlane_b32 s43, v4')
            A('    s_cmp_ge_u32 s43, s42')
            A('    s_cbranch_scc0 %s_nr' % label)
            A('    ds_write_b32 v%d, v%d offset:%d' % (vMDA, vMDA, CTL+16))
            A('    s_mov_b32 s42, -1')
            A(label + '_nr:')
            A('    s_cmp_ge_u32 s43, %s' % thr_sgpr)
            A('    s_cbranch_scc0 ' + label)
        A('L_cnext:')
        A('    s_mov_b32 s44, 0')
        A('    s_sub_u32 s38, s40, 3')
        A('L_cacc:')
        poll('L_cp1', 's38')
        A('    s_memrealtime s[54:55]')
        A('    s_waitcnt lgkmcnt(0)')
        A('    s_sub_u32 s46, s54, s52')
        A('    s_add_u32 s44, s44, s46')
        A('    s_add_u32 s38, s38, 1')
        A('    s_cmp_le_u32 s38, s40')
        A('    s_cbranch_scc1 L_cacc')
        A('    s_lshr_b32 s44, s44, 2')
        A('    s_add_u32 s45, s44, s52')
        A('    s_cmp_lg_u32 s47, 0')
        A('    s_cbranch_scc1 L_cnb')
        A('    s_add_u32 s46, s41, s39')
        A('    v_mov_b32 v9, s46')
        A('    v_mov_b32 v10, s45')
        A('    v_mov_b32 v11, s53')
        A('    s_mov_b64 exec, 1')
        if not nost: A('    global_store_dwordx2 v9, v[10:11], s[50:51] %s' % spol)
        A('    s_mov_b64 exec, -1')
        A('L_cnb:')
        A('    s_add_u32 s38, s40, %d' % (dly*4))
        poll('L_cp2', 's38')
        if sld:
            A('    s_add_u32 s60, s50, s41'); A('    s_addc_u32 s61, s51, 0')
            for j in range(sld):
                A('    s_load_dwordx2 s[%d:%d], s[60:61], %d' % (64+2*j, 65+2*j, j*256))
            A('    s_mov_b32 s44, 0'); A('    s_mov_b32 s46, 0')
            A('    s_waitcnt lgkmcnt(0)')
            for j in range(sld):
                A('    s_sub_u32 s58, s%d, s52' % (64+2*j))
                A('    s_xor_b32 s59, s%d, s53' % (65+2*j))
                A('    s_cselect_b32 s58, -1, s58')
                A('    s_sub_u32 s59, s45, s%d' % (64+2*j))
                A('    s_cmp_lt_u32 s58, 20000')
                A('    s_cselect_b32 s59, s59, 0')
                A('    s_addc_u32 s46, s46, 0')
                A('    s_add_u32 s44, s44, s59')
        else:
            A('    v_add_u32 v9, s41, v12')
            A('    s_mov_b64 exec, 0xffff')
            if not nold: A('    global_load_dwordx2 v[10:11], v9, s[50:51] %s' % lpol)
            A('    s_waitcnt vmcnt(0)')
            A('    v_subrev_u32 v13, s52, v10')
            A('    v_cmp_eq_u32 vcc, s53, v11')
            A('    s_mov_b32 s46, 20000')
            A('    v_cmp_gt_u32 s[56:57], s46, v13')
            A('    s_nop 1')
            A('    s_and_b64 vcc, vcc, s[56:57]')
            A('    v_sub_u32 v13, s45, v10')
            A('    s_nop 1')
            A('    v_cndmask_b32 v13, 0, v13, vcc')
            A('    s_bcnt1_i32_b64 s46, vcc')
            A('    s_nop 1')
            for r in (8, 4, 2, 1):
                A('    v_add_u32_dpp v13, v13, v13 row_ror:%d row_mask:0xf bank_mask:0xf' % r)
                A('    s_nop 1')
            A('    v_readfirstlane_b32 s44, v13')
            A('    s_mov_b64 exec, -1')
        A('    s_mov_b32 s58, 0')
        for th, n in ((th1, n1), (th2, n2), (th3, n3)):
            A('    s_mul_i32 s59, s46, %d' % th)
            A('    s_cmp_gt_i32 s44, s59')
            A('    s_cselect_b32 s58, %d, s58' % (n*4))
        A('    s_cmp_eq_u32 s58, 0')
        A('    s_cbranch_scc1 L_cnof')
        A('    s_add_u32 s42, s43, s58')
        A('    v_mov_b32 v11, 1')
        A('    ds_write_b32 v%d, v11 offset:%d' % (vMDA, CTL+16))
        A('L_cnof:')
        A('    s_add_u32 s40, s40, %d' % (ck*4))
        A('    s_add_u32 s41, s41, 4096')
        A('    s_cmp_le_u32 s40, %d' % (last*4))
        A('    s_cbranch_scc1 L_cnext')
        A('    s_endpgm')
    elif ctl:
        A('L_ctl:')
        A('    s_waitcnt lgkmcnt(0)')
        A('    s_barrier')
        A('    s_mov_b32 s40, %d' % (ck*4))
        A('    s_mov_b32 s41, 0')
        A('    s_mov_b32 s42, -1')
        A('    v_mov_b32 v8, 1')
        A('    s_mov_b64 exec, 1')
        A('L_cpoll:')
        A('    s_sleep %d' % slp)
        A('    ds_read_b128 v[4:7], v%d offset:%d' % (vMDA, CTL))
        A('    s_waitcnt lgkmcnt(0)')
        A('    v_add_u32 v4, v4, v5')
        A('    v_add3_u32 v4, v4, v6, v7')
        A('    s_nop 0')
        A('    v_readfirstlane_b32 s43, v4')
        A('    s_cmp_ge_u32 s43, s42')
        A('    s_cbranch_scc0 L_cnorev')
        A('    ds_write_b32 v%d, v%d offset:%d' % (vMDA, vMDA, CTL+16))
        A('    s_mov_b32 s42, -1')
        A('    s_cmp_gt_u32 s40, %d' % (last*4))
        A('    s_cbranch_scc1 L_cend')
        A('L_cnorev:')
        A('    s_cmp_ge_u32 s43, s40')
        A('    s_cbranch_scc0 L_cpoll')
        A('    s_cmp_gt_u32 s40, %d' % (last*4))
        A('    s_cbranch_scc1 L_cend')
        if ctl == 2:
            A('    v_mov_b32 v9, s41')
            A('    global_atomic_add v10, v9, v8, s[48:49] sc0')
            A('    s_add_u32 s41, s41, 4')
            A('    s_waitcnt vmcnt(0)')
            A('    v_readfirstlane_b32 s44, v10')
        elif ctl == 3:
            A('    s_mov_b32 s44, 0')
        elif ctl == 4:
            A('    s_mov_b64 exec, -1')
            A('    v_lshlrev_b32 v9, 2, v0')
            A('    v_and_b32 v9, 0xfc, v9')
            A('    global_load_dword v10, v9, s[48:49] sc0 sc1')
            A('    s_waitcnt vmcnt(0)')
            A('    s_mov_b64 exec, 1')
            A('    s_mov_b32 s44, 0')
        elif ctl == 5:
            A('    v_mov_b32 v9, s2')
            A('    global_store_byte v9, v8, s[48:49] sc0 sc1')
            A('    s_waitcnt vmcnt(0)')
            A('    s_mov_b32 s44, 0')
        elif ctl == 6:
            A('    v_mov_b32 v9, s2')
            A('    global_store_byte v9, v8, s[48:49] sc0 sc1')
            A('    s_mov_b64 exec, -1')
            A('    v_lshlrev_b32 v9, 2, v0')
            A('    v_and_b32 v9, 0xfc, v9')
            A('    global_load_dword v10, v9, s[48:49] sc0 sc1')
            A('    s_waitcnt vmcnt(0)')
            A('    s_mov_b64 exec, 1')
            A('    s_mov_b32 s44, 0')
        else:
            A('    s_mov_b32 s44, 1')
            A('    s_atomic_add s44, s[48:49], s41 glc')
            A('    s_waitcnt lgkmcnt(0)')
            A('    s_add_u32 s41, s41, 4')
        A('    s_add_u32 s45, s40, %d' % (ck*2))
        A('    s_add_u32 s40, s40, %d' % (ck*4))
        A('    s_cmp_ge_u32 s44, %d' % thr2)
        A('    s_cselect_b32 s42, -1, s45')
        A('    s_cmp_ge_u32 s44, %d' % thr)
        A('    s_cselect_b32 s46, 1, 0')
        A('    s_cselect_b32 s42, s42, -1')
        A('    v_mov_b32 v11, s46')
        A('    ds_write_b32 v%d, v11 offset:%d' % (vMDA, CTL+16))
        A('    s_cmp_gt_u32 s40, %d' % (last*4))
        A('    s_cbranch_scc0 L_cpoll')
        A('    s_cmp_eq_u32 s42, -1')
        A('    s_cbranch_scc0 L_cpoll')
        A('L_cend:')
        A('    s_endpgm')
    A('.section .rodata,"a"'); A('.p2align 6'); A('.amdhsa_kernel %s_kernel' % NAME)
    A('  .amdhsa_next_free_vgpr %d' % nv)
    A('  .amdhsa_next_free_sgpr %d' % (100 if (stamp or sld) else 64))
    A('  .amdhsa_accum_offset %d' % ((nv+3)//4*4))
    A('  .amdhsa_group_segment_fixed_size 0'); A('  .amdhsa_kernarg_size 48'); A('  .amdhsa_user_sgpr_count 2')
    A('  .amdhsa_user_sgpr_kernarg_segment_ptr 1'); A('  .amdhsa_system_sgpr_workgroup_id_x 1')
    A('  .amdhsa_float_denorm_mode_32 3')
    A('.end_amdhsa_kernel')
    return '\n'.join(o) + '\n'

if __name__ == '__main__':
    import build
    args = []
    for spec in sys.argv[1:]:
        kv = dict(x.split('=') for x in spec.split(','))
        fn = 'g3_' + spec.replace('=', '').replace(',', '_').replace('.', 'p').replace('+', '') + '.s'
        kw = {}
        for k, v in kv.items():
            if k in ('pol', 'lpol', 'spol'): kw[k] = v.replace('+', ' ').replace('none', '')
            else: kw[k] = int(v)
        open(fn, 'w').write(gen(**kw))
        args.append(build.build(fn))
    open('args.txt', 'w').write(' '.join(args))
    open('names.txt', 'w').write(' '.join(a.split(':')[0][3:-3] for a in args))
    print(' '.join('"dev/%s",' % a.split(':')[0] for a in args))
```

```python
import sys, math, struct
NAME = "standalone__mha_softmax__sampling"

def gen(cs=5, cf=6, tn=2, ck=4, last=56, dly=2, th=(0, 25, 50), nf=(1, 2, 4), ctl=1, lds=98304, P0=7):
    NW, RS, PL = 4, 8, 8
    nit = 16
    NP = 16
    SC_BYTES = 16384
    PART = SC_BYTES
    ML = PART + 2*NP*512
    CTL = ML + 2*NP*8
    wbl = [11, 12]; ibl = [10, 15, 13]
    wmask = sum(1 << b for b in wbl); imask = sum(1 << b for b in ibl)
    omask = 0xffc00 & ~wmask & ~imask
    SPAN = (wmask | imask) + 1024
    def inner(u): return sum(((u >> i) & 1) << ibl[i] for i in range(3))
    nthreads = NW*64 + (64 if ctl else 0)
    o = []
    def A(s, c=None):
        o.append(s if c is None else '%-72s ; %s' % (s, c))
    for line in open('cdna_kernels/%s.s.ref' % NAME).read().split('\n'):
        if line.startswith('; @launch'): break
        A(line)
    A("; @launch grid=(256,1,1) block=(%d,1,1) lds=%d" % (nthreads, lds))
    for l in """;
; Decode attention (Sq = 1): out[h] = softmax(q[h] . K[h]^T / sqrt(128)) V[h], 512 heads, 2048 keys, D = 128.
; HBM-bound: K and V (256 MiB each) are streamed exactly once with non-temporal 16 B/lane loads.
;
; Work split: workgroup b (one per CU, the LDS size keeps it that way) owns heads 2b, 2b+1 = one contiguous
;   1 MiB range of K and of V.  Waves 0-3 stream; one load = 4 key rows (lane group g = lane>>4 holds one row,
;   lane c = lane&15 holds d = 8c..8c+7).
; Phase 1: all of K.  score = dot(q, k) (v_dot2 + 16-lane DPP sum), scaled to log2 units, kept in LDS;
;   exact running max per (wave, lane group, head).
; Phase 2: all of V.  p = exp2(score - max), acc += p * v in f32, l += p.
; End: the 16 partial (max, l, acc[128]) of each head are merged with the true row max and normalised.
;   (Reading K and V in separate phases avoids the lower DRAM efficiency seen when two buffers are interleaved.)
; Memory-level parallelism: each wave keeps 5 KiB in flight (s_waitcnt vmcnt before every issue): just enough to
;   saturate HBM; more than that makes the fabric arbitration unfair between dies and lengthens the tail.
;   The row visiting order inside a workgroup's range is a bit permutation chosen for DRAM page locality.
; Wave 4 is a helper that only balances progress between workgroups inside this launch: 16 workgroups publish the
;   time at which they pass each 1/16 of their work (d_ws; entries older than this launch are ignored), every
;   workgroup compares itself with them and, when it lags, lets its waves keep 6 KiB in flight for a while.
;   It never affects results, and nothing waits on another workgroup.""".split('\n'):
        A(l)
    A('.amdgcn_target "amdgcn-amd-amdhsa--gfx950"')
    A('.text'); A('.globl %s_kernel' % NAME); A('.p2align 12'); A('.type %s_kernel,@function' % NAME)
    A('%s_kernel:' % NAME)
    vOFF = 1; vC16 = 2; vSA = 3
    vQ = 4; vQB = 8; vS = 12; vS2 = 16; vACC = 20
    vM = 28; vL = 29; vMA = 30; vMB = 31
    vT = 32
    vPG = 40; vPGA = 41; vMD = 42; vZ = 43
    vR = 44
    vF = vR + 4*RS
    nv = vF + 20
    def SL(u): return vR + 4*(u % RS)
    c = (128 ** -0.5) * math.log2(math.e)
    cbits = struct.unpack('<I', struct.pack('<f', c))[0]
    sIN = 40
    A('    s_load_dwordx8 s[4:11], s[0:1], 0', 'q, k, v, out')
    if ctl: A('    s_load_dwordx2 s[50:51], s[0:1], 40', 'ws')
    A('    s_cmp_ge_u32 s2, 256')
    A('    s_cbranch_scc1 L_done', 'extra workgroups exit')
    A('    v_and_b32 v%d, 63, v0' % vC16)
    A('    v_lshrrev_b32 v%d, 6, v0' % vOFF, 'wave id')
    A('    v_lshlrev_b32 v%d, 4, v%d' % (vC16, vC16), 'lane*16')
    A('    v_readfirstlane_b32 s28, v%d' % vOFF)
    A('    v_lshlrev_b32 v%d, 12, v%d' % (vSA, vOFF), 'score area of this wave (4 KiB)')
    A('    v_lshlrev_b32 v%d, 2, v%d' % (vPGA, vOFF), 'progress word address')
    A('    s_lshr_b32 s20, s2, 3')
    A('    s_xor_b32 s20, s20, s2')
    A('    s_lshr_b32 s20, s20, 2')
    A('    s_and_b32 s20, s20, 7')
    A('    s_lshl_b32 s20, s20, 12', 'per-workgroup xor on address bits 12..14')
    A('    v_lshlrev_b32 v%d, 11, v%d' % (vOFF, vOFF), 'wave id -> address bits 11,12')
    A('    s_and_b32 s21, s20, 0x%x' % wmask)
    A('    v_xor_b32 v%d, s21, v%d' % (vOFF, vOFF))
    A('    v_add_u32 v%d, v%d, v%d' % (vOFF, vOFF, vC16), 'per-lane load offset')
    A('    v_lshrrev_b32 v%d, 8, v%d' % (vT, vC16), 'g')
    A('    v_lshl_add_u32 v%d, v%d, 4, v%d' % (vSA, vT, vSA))
    A('    v_and_b32 v%d, 0xf0, v%d' % (vC16, vC16), 'c*16')
    A('    s_lshl_b32 s29, s2, 20', 'K/V range of this workgroup')
    A('    s_lshl_b32 s3, s2, 9', 'q/out range')
    A('    s_and_b32 s21, s20, 0x%x' % imask)
    for u in range(8):
        A('    s_xor_b32 s%d, s21, 0x%x' % (sIN+u, inner(u)), 'offset of load %d inside a window' % u if u == 0 else None)
    A('    s_and_b32 s22, s20, 0x%x' % omask)
    A('    s_mov_b32 s23, 0', 'window counter (spread over the remaining address bits)')
    A('    s_add_u32 s21, s29, s22')
    for u in range(P0):
        A('    s_add_u32 s36, s21, s%d' % (sIN+u))
        A('    v_add_u32 v%d, s36, v%d' % (vT+u, vOFF))
    A('    v_add_u32 v%d, s3, v%d' % (vS2, vC16), 'q offset')
    A('    v_mov_b32 v%d, 0' % vPG)
    A('    v_mov_b32 v%d, 0' % vZ)
    A('    s_mov_b32 s38, 0x%08x' % cbits, 'log2(e)/sqrt(128)')
    A('    s_mov_b32 s39, 0x%08x' % cbits)
    A('    s_mov_b32 s14, %d' % SPAN); A('    s_mov_b32 s15, 0x00020000')
    A('    s_mov_b32 s18, %d' % SPAN); A('    s_mov_b32 s19, 0x00020000')
    A('    s_mov_b32 s26, 512');       A('    s_mov_b32 s27, 0x00020000')
    A('    s_mov_b32 s35, 1', 'index of the window behind s[16:19]')
    A('    v_mov_b32 v%d, 0xff800000' % vM)
    A('    s_mov_b32 s32, 0')
    A('    s_mov_b64 vcc, 0', 'vcc != 0: deeper queue')
    if ctl:
        A('    ds_write_b32 v%d, v%d offset:%d' % (vPGA, vPG, CTL), 'progress[w] = 0 (wave 4: mode = 0)')
        A('    s_cmp_eq_u32 s28, %d' % NW)
        A('    s_cbranch_scc1 L_ctl')
    A('    s_waitcnt lgkmcnt(0)')
    A('    global_load_dwordx4 v[%d:%d], v%d, s[4:5]' % (vQ, vQ+3, vS2))
    for u in range(P0):
        A('    global_load_dwordx4 v[%d:%d], v%d, s[6:7] nt' % (SL(u), SL(u)+3, vT+u))
    A('    global_load_dwordx4 v[%d:%d], v%d, s[4:5] offset:256' % (vQB, vQB+3, vS2))
    A('    s_add_u32 s12, s6, s21', 's[12:15] = current window')
    A('    s_addc_u32 s13, s7, 0')
    A('    s_add_u32 s36, s6, s29', 's[36:37] = range being streamed')
    A('    s_addc_u32 s37, s7, 0')
    A('    s_add_u32 s30, s8, s29', 's[30:31] = V range')
    A('    s_addc_u32 s31, s9, 0')
    def nextouter():
        A('    s_or_b32 s23, s23, 0x%x' % ((~omask) & 0xffffffff))
        A('    s_add_u32 s23, s23, 1')
        A('    s_and_b32 s23, s23, 0x%x' % omask)
        A('    s_cselect_b64 s[36:37], s[36:37], s[30:31]', 'wrapped: K done, continue with V')
        A('    s_xor_b32 s21, s23, s22')
        A('    s_add_u32 s16, s36, s21', 's[16:19] = next window')
        A('    s_addc_u32 s17, s37, 0')
    def issue(idx):
        srd = 's[12:15]' if idx < RS else 's[16:19]'
        A('    buffer_load_dwordx4 v[%d:%d], v%d, %s, s%d offen nt' % (SL(idx), SL(idx)+3, vOFF, srd, sIN + idx % RS))
    nextouter()
    A('    s_add_u32 s24, s10, s3')
    A('    s_addc_u32 s25, s11, 0')
    if ctl: A('    s_barrier', 'control words initialised')
    for u in range(P0, PL):
        A('    s_waitcnt vmcnt(%d)' % (cs-1))
        issue(u)
    lab = [0]
    def capissue(idx):
        lab[0] += 1
        if ctl:
            A('    s_waitcnt vmcnt(%d)' % (cf-1))
            A('    s_cbranch_vccnz L_f%d' % lab[0])
            A('    s_waitcnt vmcnt(%d)' % (cs-1))
            A('L_f%d:' % lab[0])
        else:
            A('    s_waitcnt vmcnt(%d)' % (cs-1))
        issue(idx)
    def advance():
        A('    s_mov_b64 s[12:13], s[16:17]')
        A('    s_mov_b32 s14, s18')
        nextouter()
        A('    s_add_u32 s35, s35, 1')
        A('    s_cmp_ge_u32 s35, %d' % (4*nit))
        A('    s_cselect_b32 s18, 0, s18', 'past the end: empty descriptor, no traffic')
    A('L_khead:')
    A('    s_mov_b32 s34, %d' % nit)
    A('L_kloop:')
    if ctl: A('    ds_read_b32 v%d, v%d offset:%d' % (vMD, vZ, CTL+16))
    for u in range(RS):
        A('    s_waitcnt vmcnt(%d)' % (PL-1))
        j = u % 4
        for q in range(4):
            A('    v_dot2_f32_bf16 v%d, v%d, v%d, %s' % (vS+j, SL(u)+q, vQ+q, ('0' if q == 0 else 'v%d' % (vS+j))))
        capissue(u + PL)
        if j == 3:
            for r in (8, 4, 2, 1):
                for jj in range(4):
                    A('    v_add_f32_dpp v%d, v%d, v%d row_ror:%d row_mask:0xf bank_mask:0xf' % (vS+jj, vS+jj, vS+jj, r))
            A('    v_pk_mul_f32 v[%d:%d], v[%d:%d], s[38:39]' % (vS, vS+1, vS, vS+1))
            A('    v_pk_mul_f32 v[%d:%d], v[%d:%d], s[38:39]' % (vS+2, vS+3, vS+2, vS+3))
            A('    v_max3_f32 v%d, v%d, v%d, v%d' % (vM, vM, vS, vS+1))
            A('    ds_write_b128 v%d, v[%d:%d] offset:%d' % (vSA, vS, vS+3, (u//4)*64))
            A('    v_max3_f32 v%d, v%d, v%d, v%d' % (vM, vM, vS+2, vS+3))
    A('    v_add_u32 v%d, 128, v%d' % (vSA, vSA))
    if ctl:
        A('    v_add_u32 v%d, 1, v%d' % (vPG, vPG))
        A('    s_waitcnt lgkmcnt(2)')
        A('    v_cmp_ne_u32 vcc, 0, v%d' % vMD)
        A('    ds_write_b32 v%d, v%d offset:%d' % (vPGA, vPG, CTL))
    advance()
    A('    s_sub_u32 s34, s34, 1'); A('    s_cmp_lg_u32 s34, 0'); A('    s_cbranch_scc1 L_kloop')
    A('    s_cmp_eq_u32 s32, 1')
    A('    s_cbranch_scc1 L_kdone')
    A('    s_mov_b32 s32, 1')
    A('    v_mov_b32 v%d, v%d' % (vMA, vM))
    for q in range(4): A('    v_mov_b32 v%d, v%d' % (vQ+q, vQB+q))
    A('    v_mov_b32 v%d, 0xff800000' % vM)
    A('    s_branch L_khead')
    A('; ---------------- phase 2: p * V ----------------')
    A('L_kdone:')
    A('    v_mov_b32 v%d, v%d' % (vMB, vM))
    A('    v_subrev_u32 v%d, %d, v%d' % (vSA, SC_BYTES//NW, vSA))
    A('    v_mov_b32 v%d, v%d' % (vM, vMA))
    vPA = vQ; vPM = vQ+1
    A('    v_lshrrev_b32 v%d, 4, v0' % vPM, 'partial index = wave*4 + g')
    A('    v_lshlrev_b32 v%d, 9, v%d' % (vPA, vPM))
    A('    v_lshl_add_u32 v%d, v%d, 1, v%d' % (vPA, vC16, vPA))
    A('    v_lshlrev_b32 v%d, 3, v%d' % (vPM, vPM))
    A('    ds_read_b128 v[%d:%d], v%d' % (vS, vS+3, vSA))
    A('    s_mov_b32 s32, 0')
    A('    s_mov_b32 s34, %d' % nit)
    A('L_vhead:')
    for i in range(8): A('    v_mov_b32 v%d, 0' % (vACC+i))
    A('    v_mov_b32 v%d, 0' % vL)
    def vbody(label, capped):
        A(label + ':')
        for u in range(RS):
            j = u % 4; t = u // 4
            cur = vS if t == 0 else vS2
            nxt = vS2 if t == 0 else vS
            if j == 0:
                A('    s_waitcnt lgkmcnt(0)')
                if ctl and capped and t == 1:
                    A('    v_cmp_ne_u32 vcc, 0, v%d' % vMD)
                for jj in range(4):
                    A('    v_sub_f32 v%d, v%d, v%d' % (cur+jj, cur+jj, vM))
                A('    ds_read_b128 v[%d:%d], v%d offset:%d' % (nxt, nxt+3, vSA, (t+1)*64))
                if ctl and capped and t == 0:
                    A('    ds_read_b32 v%d, v%d offset:%d' % (vMD, vZ, CTL+16))
                    A('    ds_write_b32 v%d, v%d offset:%d' % (vPGA, vPG, CTL))
                    A('    v_add_u32 v%d, 1, v%d' % (vPG, vPG))
                for jj in range(4):
                    A('    v_exp_f32 v%d, v%d' % (cur+jj, cur+jj))
            A('    s_waitcnt vmcnt(%d)' % (PL-1))
            pr = cur + j; pb = pr & ~1; sel = pr & 1
            for q in range(4):
                x = SL(u) + q
                A('    v_lshlrev_b32 v%d, 16, v%d' % (vT + 2*q, x))
                A('    v_and_b32 v%d, 0xffff0000, v%d' % (vT + 2*q + 1, x))
            if not capped: issue(u + PL)
            for q in range(4):
                A('    v_pk_fma_f32 v[%d:%d], v[%d:%d], v[%d:%d], v[%d:%d] op_sel:[0,%d,0] op_sel_hi:[1,%d,1]' % (vACC+2*q, vACC+2*q+1, vT+2*q, vT+2*q+1, pb, pb+1, vACC+2*q, vACC+2*q+1, sel, sel))
            A('    v_add_f32 v%d, v%d, v%d' % (vL, vL, pr))
            if capped: capissue(u + PL)
        A('    v_add_u32 v%d, 128, v%d' % (vSA, vSA))
        advance()
        A('    s_sub_u32 s34, s34, 1'); A('    s_cmp_lg_u32 s34, 0'); A('    s_cbranch_scc1 ' + label)
    def wpart():
        A('    ds_write_b128 v%d, v[%d:%d] offset:%d' % (vPA, vACC, vACC+3, PART))
        A('    ds_write_b128 v%d, v[%d:%d] offset:%d' % (vPA, vACC+4, vACC+7, PART+16))
        A('    ds_write_b64 v%d, v[%d:%d] offset:%d' % (vPM, vM, vL, ML))
    vbody('L_vloop', True)
    A('    s_cmp_eq_u32 s32, 1')
    A('    s_cbranch_scc1 L_vtail')
    wpart()
    A('    s_mov_b32 s32, 1')
    A('    v_add_u32 v%d, %d, v%d' % (vPA, NP*512, vPA))
    A('    v_add_u32 v%d, %d, v%d' % (vPM, NP*8, vPM))
    A('    s_mov_b32 s34, %d' % (nit - tn))
    A('    v_mov_b32 v%d, v%d' % (vM, vMB))
    A('    s_branch L_vhead')
    A('L_vtail:', None)
    A('    s_mov_b32 s34, %d' % tn, 'last windows: full ring in flight')
    vbody('L_vloop2', False)
    wpart()
    A('; ---------------- merge the partials: thread t -> head t>>7, d = t&127 ----------------')
    vA = vF; vB = vF+1; vML = vF+2; vX = vF+4
    A('    v_and_b32 v%d, 127, v0' % vA)
    A('    v_lshrrev_b32 v%d, 7, v0' % vB)
    A('    v_lshlrev_b32 v%d, 2, v%d' % (vA, vA))
    A('    v_lshl_add_u32 v%d, v%d, 13, v%d' % (vA, vB, vA))
    A('    v_lshrrev_b32 v%d, 1, v%d' % (vT, vC16))
    A('    v_lshl_add_u32 v%d, v%d, 7, v%d' % (vB, vB, vT))
    A('    s_waitcnt lgkmcnt(0)')
    A('    s_barrier')
    A('    ds_read_b64 v[%d:%d], v%d offset:%d' % (vML, vML+1, vB, ML), 'lane c: (max, l) of partial c')
    for i in range(0, NP, 2):
        A('    ds_read2st64_b32 v[%d:%d], v%d offset0:%d offset1:%d' % (vX+i, vX+i+1, vA, PART//256 + 2*i, PART//256 + 2*i + 2))
    A('    s_waitcnt lgkmcnt(%d)' % (NP//2))
    A('    v_mov_b32 v%d, v%d' % (vT, vML))
    A('    s_nop 1')
    for r in (8, 4, 2, 1):
        A('    v_max_f32_dpp v%d, v%d, v%d row_ror:%d row_mask:0xf bank_mask:0xf' % (vT, vT, vT, r))
        if r != 1: A('    s_nop 1')
    A('    v_sub_f32 v%d, v%d, v%d' % (vML, vML, vT), 'partial max - row max')
    A('    v_exp_f32 v%d, v%d' % (vML, vML))
    A('    s_nop 0')
    A('    v_mul_f32 v%d, v%d, v%d' % (vT, vML, vML+1))
    A('    s_nop 1')
    for r in (8, 4, 2, 1):
        A('    v_add_f32_dpp v%d, v%d, v%d row_ror:%d row_mask:0xf bank_mask:0xf' % (vT, vT, vT, r))
        if r != 1: A('    s_nop 1')
    A('    v_rcp_f32 v%d, v%d' % (vT, vT))
    A('    v_mov_b32 v%d, 0' % (vT+1))
    A('    v_mov_b32 v%d, 0' % (vT+2))
    A('    v_lshlrev_b32 v%d, 1, v0' % vA)
    A('    s_waitcnt lgkmcnt(0)')
    for i in range(NP):
        A('    v_fmac_f32_dpp v%d, v%d, v%d row_newbcast:%d row_mask:0xf bank_mask:0xf' % (vT+1+(i % 2), vML, vX+i, i))
    A('    v_add_f32 v%d, v%d, v%d' % (vT+1, vT+1, vT+2))
    A('    v_mul_f32 v%d, v%d, v%d' % (vT+1, vT+1, vT))
    A('    v_cvt_pk_bf16_f32 v%d, v%d, v%d' % (vT+1, vT+1, vT+1))
    A('    buffer_store_short v%d, v%d, s[24:27], 0 offen' % (vT+1, vA))
    A('L_done:')
    A('    s_endpgm')
    if ctl:
        A('; ---------------- wave 4: progress balancing (performance only) ----------------')
        A('; s40 checkpoint (sum of the 4 progress words), s41 ws offset of its row, s42 point where the deeper queue ends,')
        A('; s[52:53] start time of this wave, s45 time at which this workgroup passed the checkpoint')
        A('L_ctl:')
        A('    s_memrealtime s[52:53]')
        A('    s_waitcnt lgkmcnt(0)')
        A('    s_barrier')
        A('    s_mov_b32 s40, %d' % (ck*4))
        A('    s_mov_b32 s41, 0')
        A('    s_mov_b32 s42, -1')
        A('    s_and_b32 s46, s2, 7')
        A('    s_lshr_b32 s39, s2, 7')
        A('    s_lshl_b32 s39, s39, 3')
        A('    s_or_b32 s39, s39, s46')
        A('    s_lshl_b32 s39, s39, 8', 'slot of a publishing workgroup')
        A('    s_and_b32 s47, s2, 0x78', '0: this workgroup publishes')
        A('    s_mov_b64 exec, 1')
        def poll(label):
            A(label + ':')
            A('    s_sleep 2', 'poll own workgroup progress in LDS')
            A('    ds_read_b128 v[4:7], v%d offset:%d' % (vZ, CTL))
            A('    s_waitcnt lgkmcnt(0)')
            A('    v_add_u32 v4, v4, v5')
            A('    v_add3_u32 v4, v4, v6, v7')
            A('    s_nop 0')
            A('    v_readfirstlane_b32 s43, v4')
            A('    s_cmp_ge_u32 s43, s42')
            A('    s_cbranch_scc0 %s_nr' % label)
            A('    ds_write_b32 v%d, v%d offset:%d' % (vZ, vZ, CTL+16), 'mode = 0')
            A('    s_mov_b32 s42, -1')
            A(label + '_nr:')
            A('    s_cmp_ge_u32 s43, s38')
            A('    s_cbranch_scc0 ' + label)
        A('L_cnext:')
        A('    s_mov_b32 s44, 0')
        A('    s_sub_u32 s38, s40, 3')
        poll('L_cp1')
        A('    s_memrealtime s[54:55]')
        A('    s_waitcnt lgkmcnt(0)')
        A('    s_sub_u32 s46, s54, s52')
        A('    s_add_u32 s44, s44, s46')
        A('    s_add_u32 s38, s38, 1')
        A('    s_cmp_le_u32 s38, s40')
        A('    s_cbranch_scc1 L_cp1')
        A('    s_lshr_b32 s44, s44, 2', 'mean over the 4 waves')
        A('    s_add_u32 s45, s44, s52')
        A('    s_cmp_lg_u32 s47, 0')
        A('    s_cbranch_scc1 L_cnb')
        A('    s_add_u32 s46, s41, s39')
        A('    v_mov_b32 v9, s46')
        A('    v_mov_b32 v10, s45')
        A('    v_mov_b32 v11, s53')
        A('    global_store_dwordx2 v9, v[10:11], s[50:51] sc0 sc1')
        A('L_cnb:')
        A('    s_add_u32 s38, s40, %d' % (dly*4))
        poll('L_cp2')
        A('    s_add_u32 s60, s50, s41')
        A('    s_addc_u32 s61, s51, 0')
        for j in range(16):
            A('    s_load_dwordx2 s[%d:%d], s[60:61], %d' % (64+2*j, 65+2*j, j*256))
        A('    s_mov_b32 s44, 0', 'sum of lags')
        A('    s_mov_b32 s46, 0', 'number of valid entries')
        A('    s_waitcnt lgkmcnt(0)')
        for j in range(16):
            A('    s_sub_u32 s58, s%d, s52' % (64+2*j), 'valid iff written after this wave started' if j == 0 else None)
            A('    s_xor_b32 s59, s%d, s53' % (65+2*j))
            A('    s_cselect_b32 s58, -1, s58')
            A('    s_sub_u32 s59, s45, s%d' % (64+2*j))
            A('    s_cmp_lt_u32 s58, 20000')
            A('    s_cselect_b32 s59, s59, 0')
            A('    s_addc_u32 s46, s46, 0')
            A('    s_add_u32 s44, s44, s59')
        A('    s_mov_b32 s58, 0')
        for t_, n in zip(th, nf):
            A('    s_mul_i32 s59, s46, %d' % t_)
            A('    s_cmp_gt_i32 s44, s59')
            A('    s_cselect_b32 s58, %d, s58' % (n*4))
        A('    s_cmp_eq_u32 s58, 0')
        A('    s_cbranch_scc1 L_cnof')
        A('    s_add_u32 s42, s43, s58')
        A('    v_mov_b32 v11, 1')
        A('    ds_write_b32 v%d, v11 offset:%d' % (vZ, CTL+16), 'mode = 1 for the next windows')
        A('L_cnof:')
        A('    s_add_u32 s40, s40, %d' % (ck*4))
        A('    s_add_u32 s41, s41, 4096')
        A('    s_cmp_le_u32 s40, %d' % (last*4))
        A('    s_cbranch_scc1 L_cnext')
        A('    s_endpgm')
        assert (last + dly) <= 32 + 2*nit - tn - 1
    A('.section .rodata,"a"'); A('.p2align 6'); A('.amdhsa_kernel %s_kernel' % NAME)
    A('  .amdhsa_next_free_vgpr %d' % nv)
    A('  .amdhsa_next_free_sgpr 96')
    A('  .amdhsa_accum_offset %d' % ((nv+3)//4*4))
    A('  .amdhsa_group_segment_fixed_size 0'); A('  .amdhsa_kernarg_size 48'); A('  .amdhsa_user_sgpr_count 2')
    A('  .amdhsa_user_sgpr_kernarg_segment_ptr 1'); A('  .amdhsa_system_sgpr_workgroup_id_x 1')
    A('  .amdhsa_float_denorm_mode_32 3')
    A('.end_amdhsa_kernel')
    return '\n'.join(o) + '\n'

if __name__ == '__main__':
    import build
    args = []
    for spec in sys.argv[1:]:
        kv = dict(x.split('=') for x in spec.split(','))
        fn = 'g5_' + spec.replace('=', '').replace(',', '_').replace('.', '-') + '.s'
        kw = {}
        for k, v in kv.items():
            kw[k] = tuple(int(x) for x in v.split('.')) if k in ('th', 'nf') else int(v)
        open(fn, 'w').write(gen(**kw))
        args.append(build.build(fn))
    open('args.txt', 'w').write(' '.join(args))
    open('names.txt', 'w').write(' '.join(a.split(':')[0][3:-3] for a in args))
    print(' '.join('"dev/%s",' % a.split(':')[0] for a in args))
```

```python
import sys, math, struct
NAME = "standalone__mha_softmax__sampling"

def gen(cs=5, cf=6, tn=2, ck=4, last=56, dly=2, th=(15, 40, 70), nf=(1, 2, 3), ctl=2, lds=98304, P0=7, rm=0, ps=(2, 5), v0=0, qlast=0, first=0, nb=16):
    NW, RS, PL = 4, 8, 8
    nit = 16
    NP = 16
    SC_BYTES = 16384
    PART = SC_BYTES
    ML = PART + 2*NP*512
    CTL = ML + 2*NP*8
    wbl = [11, 12]; ibl = [10, 15, 13]
    wmask = sum(1 << b for b in wbl); imask = sum(1 << b for b in ibl)
    omask = 0xffc00 & ~wmask & ~imask
    SPAN = (wmask | imask) + 1024
    def inner(u): return sum(((u >> i) & 1) << ibl[i] for i in range(3))
    nthreads = NW*64 + (64 if ctl else 0)
    o = []
    def A(s, c=None):
        o.append(s if c is None else '%-72s ; %s' % (s, c))
    for line in open('cdna_kernels/%s.s.ref' % NAME).read().split('\n'):
        if line.startswith('; @launch'): break
        A(line)
    A("; @launch grid=(256,1,1) block=(%d,1,1) lds=%d" % (nthreads, lds))
    for l in """;
; Decode attention (Sq = 1): out[h] = softmax(q[h] . K[h]^T / sqrt(128)) V[h], 512 heads, 2048 keys, D = 128.
; HBM-bound: K and V (256 MiB each) are streamed exactly once with non-temporal 16 B/lane loads.
;
; Work split: workgroup b (one per CU, the LDS size keeps it that way) owns heads 2b, 2b+1 = one contiguous
;   1 MiB range of K and of V.  Waves 0-3 stream; one load = 4 key rows (lane group g = lane>>4 holds one row,
;   lane c = lane&15 holds d = 8c..8c+7).
; Phase 1: all of K.  score = dot(q, k) (v_dot2 + 16-lane DPP sum), scaled to log2 units, kept in LDS;
;   exact running max per (wave, lane group, head).
; Phase 2: all of V.  p = exp2(score - max), acc += p * v in f32, l += p.
; End: the 16 partial (max, l, acc[128]) of each head are merged with the true row max and normalised.
;   (Reading K and V in separate phases avoids the lower DRAM efficiency seen when two buffers are interleaved.)
; Memory-level parallelism: each wave keeps 5 KiB in flight (s_waitcnt vmcnt before every issue): just enough to
;   saturate HBM; more than that makes the fabric arbitration unfair between dies and lengthens the tail.
;   The row visiting order inside a workgroup's range is a bit permutation chosen for DRAM page locality.
; Wave 4 is a helper that only balances progress between workgroups inside this launch: 16 workgroups publish the
;   time at which they pass each 1/16 of their work (d_ws; entries older than this launch are ignored), every
;   workgroup compares itself with them and, when it lags, lets its waves keep 6 KiB in flight for a while.
;   It never affects results, and nothing waits on another workgroup.""".split('\n'):
        A(l)
    A('.amdgcn_target "amdgcn-amd-amdhsa--gfx950"')
    A('.text'); A('.globl %s_kernel' % NAME); A('.p2align 12'); A('.type %s_kernel,@function' % NAME)
    A('%s_kernel:' % NAME)
    vOFF = 1; vC16 = 2; vSA = 3
    vQ = 4; vQB = 8; vS = 12; vS2 = 16; vACC = 20
    vM = 28; vL = 29; vMA = 30; vMB = 31
    vT = 32
    vPG = 40; vPGA = 41; vMD = 42; vZ = 43
    vR = 44
    vF = vR + 4*RS
    nv = vF + 20
    def SL(u): return vR + 4*(u % RS)
    c = (128 ** -0.5) * math.log2(math.e)
    cbits = struct.unpack('<I', struct.pack('<f', c))[0]
    sIN = 40
    A('    s_load_dwordx8 s[4:11], s[0:1], 0', 'q, k, v, out')
    if ctl: A('    s_load_dwordx2 s[50:51], s[0:1], 40', 'ws')
    A('    s_cmp_ge_u32 s2, 256')
    A('    s_cbranch_scc1 L_done', 'extra workgroups exit')
    A('    s_mov_b32 s48, s2')
    if rm == 1:
        A('    s_and_b32 s20, s2, 7'); A('    s_lshl_b32 s20, s20, 5'); A('    s_lshr_b32 s2, s2, 3'); A('    s_or_b32 s2, s2, s20')
    elif rm == 2:
        A('    s_and_b32 s20, s2, 7'); A('    s_lshl_b32 s20, s20, 1'); A('    s_bfe_u32 s21, s2, 0x10003'); A('    s_or_b32 s20, s20, s21'); A('    s_and_b32 s2, s2, 0xf0'); A('    s_or_b32 s2, s2, s20')
    elif rm == 3:
        A('    s_and_b32 s20, s2, 7'); A('    s_lshl_b32 s20, s20, 2'); A('    s_bfe_u32 s21, s2, 0x20003'); A('    s_or_b32 s20, s20, s21'); A('    s_and_b32 s2, s2, 0xe0'); A('    s_or_b32 s2, s2, s20')
    if rm == 4:
        A('    s_and_b32 s20, s2, 7'); A('    s_lshl_b32 s20, s20, 3'); A('    s_bfe_u32 s21, s2, 0x30003'); A('    s_or_b32 s20, s20, s21'); A('    s_and_b32 s2, s2, 0xc0'); A('    s_or_b32 s2, s2, s20')
    A('    v_and_b32 v%d, 63, v0' % vC16)
    A('    v_lshrrev_b32 v%d, 6, v0' % vOFF, 'wave id')
    A('    v_lshlrev_b32 v%d, 4, v%d' % (vC16, vC16), 'lane*16')
    A('    v_readfirstlane_b32 s28, v%d' % vOFF)
    A('    v_lshlrev_b32 v%d, 12, v%d' % (vSA, vOFF), 'score area of this wave (4 KiB)')
    A('    v_lshlrev_b32 v%d, 2, v%d' % (vPGA, vOFF), 'progress word address')
    A('    s_lshr_b32 s20, s2, %d' % ps[0])
    for x in ps[1:]:
        A('    s_lshr_b32 s21, s2, %d' % x)
        A('    s_xor_b32 s20, s20, s21')
    A('    s_and_b32 s20, s20, 7')
    A('    s_lshl_b32 s20, s20, 12', 'per-workgroup xor on address bits 12..14')
    A('    v_lshlrev_b32 v%d, 11, v%d' % (vOFF, vOFF), 'wave id -> address bits 11,12')
    A('    s_and_b32 s21, s20, 0x%x' % wmask)
    A('    v_xor_b32 v%d, s21, v%d' % (vOFF, vOFF))
    A('    v_add_u32 v%d, v%d, v%d' % (vOFF, vOFF, vC16), 'per-lane load offset')
    A('    v_lshrrev_b32 v%d, 8, v%d' % (vT, vC16), 'g')
    A('    v_lshl_add_u32 v%d, v%d, 4, v%d' % (vSA, vT, vSA))
    A('    v_and_b32 v%d, 0xf0, v%d' % (vC16, vC16), 'c*16')
    A('    s_lshl_b32 s29, s2, 20', 'K/V range of this workgroup')
    A('    s_lshl_b32 s3, s2, 9', 'q/out range')
    A('    s_and_b32 s21, s20, 0x%x' % imask)
    for u in range(8):
        A('    s_xor_b32 s%d, s21, 0x%x' % (sIN+u, inner(u)), 'offset of load %d inside a window' % u if u == 0 else None)
    A('    s_and_b32 s22, s20, 0x%x' % omask)
    A('    s_mov_b32 s23, 0', 'window counter (spread over the remaining address bits)')
    A('    s_add_u32 s21, s29, s22')
    for u in range(P0):
        A('    s_add_u32 s36, s21, s%d' % (sIN+u))
        A('    v_add_u32 v%d, s36, v%d' % (vT+u, vOFF))
    A('    v_add_u32 v%d, s3, v%d' % (vS2, vC16), 'q offset')
    A('    v_mov_b32 v%d, 0' % vPG)
    A('    v_mov_b32 v%d, 0' % vZ)
    A('    s_mov_b32 s38, 0x%08x' % cbits, 'log2(e)/sqrt(128)')
    A('    s_mov_b32 s39, 0x%08x' % cbits)
    A('    s_mov_b32 s14, %d' % SPAN); A('    s_mov_b32 s15, 0x00020000')
    A('    s_mov_b32 s18, %d' % SPAN); A('    s_mov_b32 s19, 0x00020000')
    A('    s_mov_b32 s26, 512');       A('    s_mov_b32 s27, 0x00020000')
    A('    s_mov_b32 s35, 1', 'index of the window behind s[16:19]')
    A('    v_mov_b32 v%d, 0xff800000' % vM)
    A('    s_mov_b32 s32, 0')
    A('    s_mov_b64 vcc, %d' % (-1 if v0 else 0), 'vcc != 0: deeper queue')
    if ctl:
        A('    ds_write_b32 v%d, v%d offset:%d' % (vPGA, vPG, CTL), 'progress[w] = 0 (wave 4: mode = 0)')
        if ctl == 2: A('    ds_write_b32 v%d, v%d offset:%d' % (vPGA, vPG, CTL+16), 'mode[w] = 0')
        A('    s_cmp_eq_u32 s28, %d' % NW)
        A('    s_cbranch_scc1 L_ctl')
    A('    s_waitcnt lgkmcnt(0)')
    A('    global_load_dwordx4 v[%d:%d], v%d, s[4:5]' % (vQ, vQ+3, vS2))
    for u in range(P0):
        A('    global_load_dwordx4 v[%d:%d], v%d, s[6:7] nt' % (SL(u), SL(u)+3, vT+u))
    A('    global_load_dwordx4 v[%d:%d], v%d, s[4:5] offset:256' % (vQB, vQB+3, vS2))
    A('    s_add_u32 s12, s6, s21', 's[12:15] = current window')
    A('    s_addc_u32 s13, s7, 0')
    A('    s_add_u32 s36, s6, s29', 's[36:37] = range being streamed')
    A('    s_addc_u32 s37, s7, 0')
    A('    s_add_u32 s30, s8, s29', 's[30:31] = V range')
    A('    s_addc_u32 s31, s9, 0')
    def nextouter():
        A('    s_or_b32 s23, s23, 0x%x' % ((~omask) & 0xffffffff))
        A('    s_add_u32 s23, s23, 1')
        A('    s_and_b32 s23, s23, 0x%x' % omask)
        A('    s_cselect_b64 s[36:37], s[36:37], s[30:31]', 'wrapped: K done, continue with V')
        A('    s_xor_b32 s21, s23, s22')
        A('    s_add_u32 s16, s36, s21', 's[16:19] = next window')
        A('    s_addc_u32 s17, s37, 0')
    def issue(idx):
        srd = 's[12:15]' if idx < RS else 's[16:19]'
        A('    buffer_load_dwordx4 v[%d:%d], v%d, %s, s%d offen nt' % (SL(idx), SL(idx)+3, vOFF, srd, sIN + idx % RS))
    nextouter()
    A('    s_add_u32 s24, s10, s3')
    A('    s_addc_u32 s25, s11, 0')
    if ctl: A('    s_barrier', 'control words initialised')
    for u in range(P0, PL):
        A('    s_waitcnt vmcnt(%d)' % (cs-1))
        issue(u)
    lab = [0]
    def capissue(idx):
        lab[0] += 1
        if ctl:
            A('    s_waitcnt vmcnt(%d)' % (cf-1))
            A('    s_cbranch_vccnz L_f%d' % lab[0])
            A('    s_waitcnt vmcnt(%d)' % (cs-1))
            A('L_f%d:' % lab[0])
        else:
            A('    s_waitcnt vmcnt(%d)' % (cs-1))
        issue(idx)
    def advance():
        A('    s_mov_b64 s[12:13], s[16:17]')
        A('    s_mov_b32 s14, s18')
        nextouter()
        A('    s_add_u32 s35, s35, 1')
        A('    s_cmp_ge_u32 s35, %d' % (4*nit))
        A('    s_cselect_b32 s18, 0, s18', 'past the end: empty descriptor, no traffic')
    A('L_khead:')
    A('    s_mov_b32 s34, %d' % nit)
    A('L_kloop:')
    if ctl: A('    ds_read_b32 v%d, v%d offset:%d' % (vMD, vPGA if ctl == 2 else vZ, CTL+16))
    for u in range(RS):
        A('    s_waitcnt vmcnt(%d)' % (PL-1))
        j = u % 4
        for q in range(4):
            A('    v_dot2_f32_bf16 v%d, v%d, v%d, %s' % (vS+j, SL(u)+q, vQ+q, ('0' if q == 0 else 'v%d' % (vS+j))))
        capissue(u + PL)
        if j == 3:
            for r in (8, 4, 2, 1):
                for jj in range(4):
                    A('    v_add_f32_dpp v%d, v%d, v%d row_ror:%d row_mask:0xf bank_mask:0xf' % (vS+jj, vS+jj, vS+jj, r))
            A('    v_pk_mul_f32 v[%d:%d], v[%d:%d], s[38:39]' % (vS, vS+1, vS, vS+1))
            A('    v_pk_mul_f32 v[%d:%d], v[%d:%d], s[38:39]' % (vS+2, vS+3, vS+2, vS+3))
            A('    v_max3_f32 v%d, v%d, v%d, v%d' % (vM, vM, vS, vS+1))
            A('    ds_write_b128 v%d, v[%d:%d] offset:%d' % (vSA, vS, vS+3, (u//4)*64))
            A('    v_max3_f32 v%d, v%d, v%d, v%d' % (vM, vM, vS+2, vS+3))
    A('    v_add_u32 v%d, 128, v%d' % (vSA, vSA))
    if ctl:
        A('    v_add_u32 v%d, 1, v%d' % (vPG, vPG))
        A('    s_waitcnt lgkmcnt(2)')
        A('    v_cmp_ne_u32 vcc, 0, v%d' % vMD)
        A('    ds_write_b32 v%d, v%d offset:%d' % (vPGA, vPG, CTL))
    advance()
    A('    s_sub_u32 s34, s34, 1'); A('    s_cmp_lg_u32 s34, 0'); A('    s_cbranch_scc1 L_kloop')
    A('    s_cmp_eq_u32 s32, 1')
    A('    s_cbranch_scc1 L_kdone')
    A('    s_mov_b32 s32, 1')
    A('    v_mov_b32 v%d, v%d' % (vMA, vM))
    for q in range(4): A('    v_mov_b32 v%d, v%d' % (vQ+q, vQB+q))
    A('    v_mov_b32 v%d, 0xff800000' % vM)
    A('    s_branch L_khead')
    A('; ---------------- phase 2: p * V ----------------')
    A('L_kdone:')
    A('    v_mov_b32 v%d, v%d' % (vMB, vM))
    A('    v_subrev_u32 v%d, %d, v%d' % (vSA, SC_BYTES//NW, vSA))
    A('    v_mov_b32 v%d, v%d' % (vM, vMA))
    vPA = vQ; vPM = vQ+1
    A('    v_lshrrev_b32 v%d, 4, v0' % vPM, 'partial index = wave*4 + g')
    A('    v_lshlrev_b32 v%d, 9, v%d' % (vPA, vPM))
    A('    v_lshl_add_u32 v%d, v%d, 1, v%d' % (vPA, vC16, vPA))
    A('    v_lshlrev_b32 v%d, 3, v%d' % (vPM, vPM))
    A('    ds_read_b128 v[%d:%d], v%d' % (vS, vS+3, vSA))
    A('    s_mov_b32 s32, 0')
    A('    s_mov_b32 s34, %d' % nit)
    A('L_vhead:')
    for i in range(8): A('    v_mov_b32 v%d, 0' % (vACC+i))
    A('    v_mov_b32 v%d, 0' % vL)
    def vbody(label, capped):
        A(label + ':')
        for u in range(RS):
            j = u % 4; t = u // 4
            cur = vS if t == 0 else vS2
            nxt = vS2 if t == 0 else vS
            if j == 0:
                A('    s_waitcnt lgkmcnt(0)')
                if ctl and capped and t == 1:
                    A('    v_cmp_ne_u32 vcc, 0, v%d' % vMD)
                for jj in range(4):
                    A('    v_sub_f32 v%d, v%d, v%d' % (cur+jj, cur+jj, vM))
                A('    ds_read_b128 v[%d:%d], v%d offset:%d' % (nxt, nxt+3, vSA, (t+1)*64))
                if ctl and capped and t == 0:
                    A('    ds_read_b32 v%d, v%d offset:%d' % (vMD, vPGA if ctl == 2 else vZ, CTL+16))
                    A('    ds_write_b32 v%d, v%d offset:%d' % (vPGA, vPG, CTL))
                    A('    v_add_u32 v%d, 1, v%d' % (vPG, vPG))
                for jj in range(4):
                    A('    v_exp_f32 v%d, v%d' % (cur+jj, cur+jj))
            A('    s_waitcnt vmcnt(%d)' % (PL-1))
            pr = cur + j; pb = pr & ~1; sel = pr & 1
            for q in range(4):
                x = SL(u) + q
                A('    v_lshlrev_b32 v%d, 16, v%d' % (vT + 2*q, x))
                A('    v_and_b32 v%d, 0xffff0000, v%d' % (vT + 2*q + 1, x))
            if not capped: issue(u + PL)
            for q in range(4):
                A('    v_pk_fma_f32 v[%d:%d], v[%d:%d], v[%d:%d], v[%d:%d] op_sel:[0,%d,0] op_sel_hi:[1,%d,1]' % (vACC+2*q, vACC+2*q+1, vT+2*q, vT+2*q+1, pb, pb+1, vACC+2*q, vACC+2*q+1, sel, sel))
            A('    v_add_f32 v%d, v%d, v%d' % (vL, vL, pr))
            if capped: capissue(u + PL)
        A('    v_add_u32 v%d, 128, v%d' % (vSA, vSA))
        advance()
        A('    s_sub_u32 s34, s34, 1'); A('    s_cmp_lg_u32 s34, 0'); A('    s_cbranch_scc1 ' + label)
    def wpart():
        A('    ds_write_b128 v%d, v[%d:%d] offset:%d' % (vPA, vACC, vACC+3, PART))
        A('    ds_write_b128 v%d, v[%d:%d] offset:%d' % (vPA, vACC+4, vACC+7, PART+16))
        A('    ds_write_b64 v%d, v[%d:%d] offset:%d' % (vPM, vM, vL, ML))
    vbody('L_vloop', True)
    A('    s_cmp_eq_u32 s32, 1')
    A('    s_cbranch_scc1 L_vtail')
    wpart()
    A('    s_mov_b32 s32, 1')
    A('    v_add_u32 v%d, %d, v%d' % (vPA, NP*512, vPA))
    A('    v_add_u32 v%d, %d, v%d' % (vPM, NP*8, vPM))
    A('    s_mov_b32 s34, %d' % (nit - tn))
    A('    v_mov_b32 v%d, v%d' % (vM, vMB))
    A('    s_branch L_vhead')
    A('L_vtail:', None)
    A('    s_mov_b32 s34, %d' % tn, 'last windows: full ring in flight')
    vbody('L_vloop2', False)
    wpart()
    A('; ---------------- merge the partials: thread t -> head t>>7, d = t&127 ----------------')
    vA = vF; vB = vF+1; vML = vF+2; vX = vF+4
    A('    v_and_b32 v%d, 127, v0' % vA)
    A('    v_lshrrev_b32 v%d, 7, v0' % vB)
    A('    v_lshlrev_b32 v%d, 2, v%d' % (vA, vA))
    A('    v_lshl_add_u32 v%d, v%d, 13, v%d' % (vA, vB, vA))
    A('    v_lshrrev_b32 v%d, 1, v%d' % (vT, vC16))
    A('    v_lshl_add_u32 v%d, v%d, 7, v%d' % (vB, vB, vT))
    A('    s_waitcnt lgkmcnt(0)')
    A('    s_barrier')
    A('    ds_read_b64 v[%d:%d], v%d offset:%d' % (vML, vML+1, vB, ML), 'lane c: (max, l) of partial c')
    for i in range(0, NP, 2):
        A('    ds_read2st64_b32 v[%d:%d], v%d offset0:%d offset1:%d' % (vX+i, vX+i+1, vA, PART//256 + 2*i, PART//256 + 2*i + 2))
    A('    s_waitcnt lgkmcnt(%d)' % (NP//2))
    A('    v_mov_b32 v%d, v%d' % (vT, vML))
    A('    s_nop 1')
    for r in (8, 4, 2, 1):
        A('    v_max_f32_dpp v%d, v%d, v%d row_ror:%d row_mask:0xf bank_mask:0xf' % (vT, vT, vT, r))
        if r != 1: A('    s_nop 1')
    A('    v_sub_f32 v%d, v%d, v%d' % (vML, vML, vT), 'partial max - row max')
    A('    v_exp_f32 v%d, v%d' % (vML, vML))
    A('    s_nop 0')
    A('    v_mul_f32 v%d, v%d, v%d' % (vT, vML, vML+1))
    A('    s_nop 1')
    for r in (8, 4, 2, 1):
        A('    v_add_f32_dpp v%d, v%d, v%d row_ror:%d row_mask:0xf bank_mask:0xf' % (vT, vT, vT, r))
        if r != 1: A('    s_nop 1')
    A('    v_rcp_f32 v%d, v%d' % (vT, vT))
    A('    v_mov_b32 v%d, 0' % (vT+1))
    A('    v_mov_b32 v%d, 0' % (vT+2))
    A('    v_lshlrev_b32 v%d, 1, v0' % vA)
    A('    s_waitcnt lgkmcnt(0)')
    for i in range(NP):
        A('    v_fmac_f32_dpp v%d, v%d, v%d row_newbcast:%d row_mask:0xf bank_mask:0xf' % (vT+1+(i % 2), vML, vX+i, i))
    A('    v_add_f32 v%d, v%d, v%d' % (vT+1, vT+1, vT+2))
    A('    v_mul_f32 v%d, v%d, v%d' % (vT+1, vT+1, vT))
    A('    v_cvt_pk_bf16_f32 v%d, v%d, v%d' % (vT+1, vT+1, vT+1))
    A('    buffer_store_short v%d, v%d, s[24:27], 0 offen' % (vT+1, vA))
    A('L_done:')
    A('    s_endpgm')
    if ctl == 2:
        A('; ---------------- wave 4: progress balancing (performance only) ----------------')
        A('; lanes 0-3 mirror waves 0-3: v4 progress, v5 window index where the deeper queue ends, v6 time at the checkpoint')
        A('; s40 checkpoint (window index), s41 ws offset of its row, s[52:53] start time of this wave')
        A('L_ctl:')
        A('    s_memrealtime s[52:53]')
        A('    v_and_b32 v8, 3, v0')
        A('    v_lshlrev_b32 v8, 2, v8')
        A('    v_mov_b32 v5, 0')
        A('    v_mov_b32 v6, 0')
        A('    s_waitcnt lgkmcnt(0)')
        A('    s_barrier')
        A('    s_mov_b32 s40, %d' % (first or ck))
        A('    s_mov_b32 s41, 0')
        A('    s_and_b32 s46, s48, 7')
        A('    s_lshr_b32 s39, s48, 7')
        A('    s_lshl_b32 s39, s39, 3')
        A('    s_or_b32 s39, s39, s46')
        A('    s_lshl_b32 s39, s39, 8', 'slot of a publishing workgroup')
        A('    s_and_b32 s47, s48, 0x%x' % (0x78 if nb == 16 else 0xf8), '0: this workgroup publishes')
        A('    s_mov_b64 exec, 15')
        def poll(label, thr, stampit):
            A(label + ':')
            A('    s_sleep 2', 'poll own workgroup progress in LDS')
            A('    ds_read_b32 v4, v8 offset:%d' % CTL)
            A('    s_waitcnt lgkmcnt(0)')
            A('    v_cmp_lt_u32 vcc, v4, v5')
            A('    s_nop 1')
            A('    v_cndmask_b32 v7, 0, 1, vcc')
            A('    v_cmp_gt_u32 vcc, %s, v4' % thr, 'waves that have not reached it yet')
            A('    ds_write_b32 v8, v7 offset:%d' % (CTL+16), 'mode[w]')
            if stampit:
                A('    s_andn2_b32 s56, exec_lo, vcc_lo')
                A('    s_and_b32 s56, s56, s42', 'waves that just passed the checkpoint')
                A('    s_cbranch_scc0 ' + label)
                A('    s_memrealtime s[54:55]')
                A('    s_mov_b32 s42, vcc_lo')
                A('    s_waitcnt lgkmcnt(0)')
                A('    s_sub_u32 s46, s54, s52')
                A('    v_mov_b32 v9, s46')
                A('    v_cndmask_b32 v6, v6, v9, s[56:57]')
            A('    s_cbranch_vccnz ' + label)
        A('    s_mov_b32 s57, 0')
        A('L_cnext:')
        A('    s_mov_b32 s42, 15')
        poll('L_cp1', 's40', True)
        A('    s_cmp_lg_u32 s47, 0')
        A('    s_cbranch_scc1 L_cnb')
        A('    s_nop 1')
        A('    v_add_u32_dpp v10, v6, v6 quad_perm:[1,0,3,2] row_mask:0xf bank_mask:0xf')
        A('    s_add_u32 s46, s41, s39')
        A('    v_mov_b32 v9, s46')
        A('    v_add_u32_dpp v10, v10, v10 quad_perm:[2,3,0,1] row_mask:0xf bank_mask:0xf')
        A('    v_mov_b32 v11, s53')
        A('    v_lshrrev_b32 v10, 2, v10', 'mean over the 4 waves')
        A('    v_add_u32 v10, s52, v10')
        A('    s_mov_b64 exec, 1')
        A('    global_store_dwordx2 v9, v[10:11], s[50:51] sc0 sc1')
        A('    s_mov_b64 exec, 15')
        A('L_cnb:')
        A('    s_add_u32 s38, s40, %d' % dly)
        poll('L_cp2', 's38', False)
        A('    s_add_u32 s60, s50, s41')
        A('    s_addc_u32 s61, s51, 0')
        for j in range(nb):
            A('    s_load_dwordx2 s[%d:%d], s[60:61], %d' % (64+2*j, 65+2*j, j*256))
        A('    s_mov_b32 s44, 0', 'sum of published times')
        A('    s_mov_b32 s46, 0', 'number of valid entries')
        A('    s_waitcnt lgkmcnt(0)')
        for j in range(nb):
            A('    s_sub_u32 s58, s%d, s52' % (64+2*j), 'valid iff written after this wave started' if j == 0 else None)
            A('    s_xor_b32 s59, s%d, s53' % (65+2*j))
            A('    s_cselect_b32 s58, -1, s58')
            A('    s_cmp_lt_u32 s58, 20000')
            A('    s_cselect_b32 s58, s58, 0')
            A('    s_addc_u32 s46, s46, 0')
            A('    s_add_u32 s44, s44, s58')
        A('    v_mul_u32_u24 v9, s46, v6')
        A('    v_subrev_u32 v9, s44, v9', 'count * lag of each wave')
        A('    v_mov_b32 v7, 0')
        for t_, n in zip(th, nf):
            A('    s_mul_i32 s59, s46, %d' % t_)
            A('    v_cmp_lt_i32 vcc, s59, v9')
            A('    s_nop 1')
            A('    v_cndmask_b32 v7, v7, %d, vcc' % n)
        A('    v_add_u32 v5, v4, v7', 'deeper queue for the next 0..%d windows' % max(nf))
        A('    s_add_u32 s40, s40, %d' % ck)
        A('    s_add_u32 s41, s41, 4096')
        A('    s_cmp_le_u32 s40, %d' % last)
        A('    s_cbranch_scc1 L_cnext')
        A('    v_cmp_lt_u32 vcc, v4, v5')
        A('    s_nop 1')
        A('    v_cndmask_b32 v7, 0, 1, vcc')
        A('    ds_write_b32 v8, v7 offset:%d' % (CTL+16))
        A('    s_endpgm')
        assert (last + dly) <= 32 + 2*nit - tn - 1
    elif ctl:
        A('; ---------------- wave 4: progress balancing (performance only) ----------------')
        A('; s40 checkpoint (sum of the 4 progress words), s41 ws offset of its row, s42 point where the deeper queue ends,')
        A('; s[52:53] start time of this wave, s45 time at which this workgroup passed the checkpoint')
        A('L_ctl:')
        A('    s_memrealtime s[52:53]')
        A('    s_waitcnt lgkmcnt(0)')
        A('    s_barrier')
        A('    s_mov_b32 s40, %d' % (ck*4))
        A('    s_mov_b32 s41, 0')
        A('    s_mov_b32 s42, -1')
        A('    s_and_b32 s46, s48, 7')
        A('    s_lshr_b32 s39, s48, 7')
        A('    s_lshl_b32 s39, s39, 3')
        A('    s_or_b32 s39, s39, s46')
        A('    s_lshl_b32 s39, s39, 8', 'slot of a publishing workgroup')
        A('    s_and_b32 s47, s48, 0x78', '0: this workgroup publishes')
        A('    s_mov_b64 exec, 1')
        def poll(label):
            A(label + ':')
            A('    s_sleep 2', 'poll own workgroup progress in LDS')
            A('    ds_read_b128 v[4:7], v%d offset:%d' % (vZ, CTL))
            A('    s_waitcnt lgkmcnt(0)')
            A('    v_add_u32 v4, v4, v5')
            A('    v_add3_u32 v4, v4, v6, v7')
            A('    s_nop 0')
            A('    v_readfirstlane_b32 s43, v4')
            A('    s_cmp_ge_u32 s43, s42')
            A('    s_cbranch_scc0 %s_nr' % label)
            A('    ds_write_b32 v%d, v%d offset:%d' % (vZ, vZ, CTL+16), 'mode = 0')
            A('    s_mov_b32 s42, -1')
            A(label + '_nr:')
            A('    s_cmp_ge_u32 s43, s38')
            A('    s_cbranch_scc0 ' + label)
        A('L_cnext:')
        A('    s_mov_b32 s44, 0')
        A('    s_sub_u32 s38, s40, 3')
        poll('L_cp1')
        A('    s_memrealtime s[54:55]')
        A('    s_waitcnt lgkmcnt(0)')
        A('    s_sub_u32 s46, s54, s52')
        A('    s_add_u32 s44, s44, s46')
        A('    s_add_u32 s38, s38, 1')
        A('    s_cmp_le_u32 s38, s40')
        A('    s_cbranch_scc1 L_cp1')
        A('    s_lshr_b32 s44, s44, 2', 'mean over the 4 waves')
        A('    s_add_u32 s45, s44, s52')
        A('    s_cmp_lg_u32 s47, 0')
        A('    s_cbranch_scc1 L_cnb')
        A('    s_add_u32 s46, s41, s39')
        A('    v_mov_b32 v9, s46')
        A('    v_mov_b32 v10, s45')
        A('    v_mov_b32 v11, s53')
        A('    global_store_dwordx2 v9, v[10:11], s[50:51] sc0 sc1')
        A('L_cnb:')
        A('    s_add_u32 s38, s40, %d' % (dly*4))
        poll('L_cp2')
        A('    s_add_u32 s60, s50, s41')
        A('    s_addc_u32 s61, s51, 0')
        for j in range(16):
            A('    s_load_dwordx2 s[%d:%d], s[60:61], %d' % (64+2*j, 65+2*j, j*256))
        A('    s_mov_b32 s44, 0', 'sum of lags')
        A('    s_mov_b32 s46, 0', 'number of valid entries')
        A('    s_waitcnt lgkmcnt(0)')
        for j in range(16):
            A('    s_sub_u32 s58, s%d, s52' % (64+2*j), 'valid iff written after this wave started' if j == 0 else None)
            A('    s_xor_b32 s59, s%d, s53' % (65+2*j))
            A('    s_cselect_b32 s58, -1, s58')
            A('    s_sub_u32 s59, s45, s%d' % (64+2*j))
            A('    s_cmp_lt_u32 s58, 20000')
            A('    s_cselect_b32 s59, s59, 0')
            A('    s_addc_u32 s46, s46, 0')
            A('    s_add_u32 s44, s44, s59')
        A('    s_mov_b32 s58, 0')
        for t_, n in zip(th, nf):
            A('    s_mul_i32 s59, s46, %d' % t_)
            A('    s_cmp_gt_i32 s44, s59')
            A('    s_cselect_b32 s58, %d, s58' % (n*4))
        A('    s_cmp_eq_u32 s58, 0')
        A('    s_cbranch_scc1 L_cnof')
        A('    s_add_u32 s42, s43, s58')
        A('    v_mov_b32 v11, 1')
        A('    ds_write_b32 v%d, v11 offset:%d' % (vZ, CTL+16), 'mode = 1 for the next windows')
        A('L_cnof:')
        A('    s_add_u32 s40, s40, %d' % (ck*4))
        A('    s_add_u32 s41, s41, 4096')
        A('    s_cmp_le_u32 s40, %d' % (last*4))
        A('    s_cbranch_scc1 L_cnext')
        A('    s_endpgm')
        assert (last + dly) <= 32 + 2*nit - tn - 1
    A('.section .rodata,"a"'); A('.p2align 6'); A('.amdhsa_kernel %s_kernel' % NAME)
    A('  .amdhsa_next_free_vgpr %d' % nv)
    A('  .amdhsa_next_free_sgpr 96')
    A('  .amdhsa_accum_offset %d' % ((nv+3)//4*4))
    A('  .amdhsa_group_segment_fixed_size 0'); A('  .amdhsa_kernarg_size 48'); A('  .amdhsa_user_sgpr_count 2')
    A('  .amdhsa_user_sgpr_kernarg_segment_ptr 1'); A('  .amdhsa_system_sgpr_workgroup_id_x 1')
    A('  .amdhsa_float_denorm_mode_32 3')
    A('.end_amdhsa_kernel')
    return '\n'.join(o) + '\n'

if __name__ == '__main__':
    import build
    args = []
    for spec in sys.argv[1:]:
        kv = dict(x.split('=') for x in spec.split(','))
        fn = 'g5_' + spec.replace('=', '').replace(',', '_').replace('.', '-') + '.s'
        kw = {}
        for k, v in kv.items():
            kw[k] = tuple(int(x) for x in v.split('.')) if k in ('th', 'nf', 'ps') else int(v)
        open(fn, 'w').write(gen(**kw))
        args.append(build.build(fn))
    open('args.txt', 'w').write(' '.join(args))
    open('names.txt', 'w').write(' '.join(a.split(':')[0][3:-3] for a in args))
    print(' '.join('"dev/%s",' % a.split(':')[0] for a in args))
```

```python
import sys, math, struct
NAME = "standalone__mha_softmax__sampling"

def gen(cs=5, cf=6, tn=2, ck=4, last=56, dly=2, th=(15, 40, 70), nf=(1, 2, 3), ctl=2, lds=98304, P0=8, rm=3, ps=(2, 5), v0=0, qlast=0, first=0, nb=16, wb=(11, 12), ib=(16, 10, 13), b17=1):
    NW, RS, PL = 4, 8, 8
    nit = 16
    NP = 16
    SC_BYTES = 16384
    PART = SC_BYTES
    ML = PART + 2*NP*512
    CTL = ML + 2*NP*8
    wbl = list(wb); ibl = list(ib)
    wmask = sum(1 << b for b in wbl); imask = sum(1 << b for b in ibl)
    omask = 0xffc00 & ~wmask & ~imask
    SPAN = (wmask | imask) + 1024
    def inner(u): return sum(((u >> i) & 1) << ibl[i] for i in range(3))
    nthreads = NW*64 + (64 if ctl else 0)
    o = []
    def A(s, c=None):
        o.append(s if c is None else '%-72s ; %s' % (s, c))
    for line in open('cdna_kernels/%s.s.ref' % NAME).read().split('\n'):
        if line.startswith('; @launch'): break
        A(line)
    A("; @launch grid=(256,1,1) block=(%d,1,1) lds=%d" % (nthreads, lds))
    for l in """;
; Decode attention (Sq = 1): out[h] = softmax(q[h] . K[h]^T / sqrt(128)) V[h], 512 heads, 2048 keys, D = 128.
; HBM-bound: K and V (256 MiB each) are streamed exactly once with non-temporal 16 B/lane loads.
;
; Work split: one workgroup per CU (the LDS size keeps it that way); it owns two consecutive heads = one contiguous
;   1 MiB range of K and of V.  Waves 0-3 stream; one load = 4 key rows (lane group g = lane>>4 holds one row,
;   lane c = lane&15 holds d = 8c..8c+7).
; Phase 1: all of K.  score = dot(q, k) (v_dot2 + 16-lane DPP sum), scaled to log2 units and kept in LDS, with the
;   exact running max per (wave, lane group, head).
; Phase 2: all of V.  p = exp2(score - max), acc += p * v in f32, l += p.
; End: the 16 partial (max, l, acc[128]) of each head are merged with the true row max and normalised.
;   (Reading K and V in separate phases avoids the lower DRAM efficiency seen when two buffers are interleaved.)
; Memory-level parallelism: each wave keeps 5 KiB in flight (s_waitcnt vmcnt before every issue): just enough to
;   saturate HBM; more than that makes the fabric arbitration unfair between dies and lengthens the tail.
;   The row visiting order inside a workgroup's range is a bit permutation chosen for DRAM page locality.
; Wave 4 is a helper that balances progress between workgroups inside this launch, so that all finish together:
;   16 workgroups publish when they pass each 1/16 of their work (in d_ws; entries not written by this launch are
;   ignored), every workgroup compares its waves with them and lets a lagging wave keep 6 KiB in flight for a few
;   windows.  It never affects results, and nothing ever waits on another workgroup.""".split('\n'):
        A(l)
    A('.amdgcn_target "amdgcn-amd-amdhsa--gfx950"')
    A('.text'); A('.globl %s_kernel' % NAME); A('.p2align 12'); A('.type %s_kernel,@function' % NAME)
    A('%s_kernel:' % NAME)
    vOFF = 1; vC16 = 2; vSA = 3
    vQ = 4; vQB = 8; vS = 12; vS2 = 16; vACC = 20
    vM = 28; vL = 29; vMA = 30; vMB = 31
    vT = 32
    vPG = 40; vPGA = 41; vMD = 42; vZ = 43
    vR = 44
    vF = vR + 4*RS
    nv = vF + 20
    def SL(u): return vR + 4*(u % RS)
    c = (128 ** -0.5) * math.log2(math.e)
    cbits = struct.unpack('<I', struct.pack('<f', c))[0]
    sIN = 40
    A('    s_load_dwordx8 s[4:11], s[0:1], 0', 'q, k, v, out')
    if ctl: A('    s_load_dwordx2 s[50:51], s[0:1], 40', 'ws')
    A('    s_cmp_ge_u32 s2, 256')
    A('    s_cbranch_scc1 L_done', 'extra workgroups exit')
    A('    s_mov_b32 s48, s2')
    if rm == 1:
        A('    s_and_b32 s20, s2, 7'); A('    s_lshl_b32 s20, s20, 5'); A('    s_lshr_b32 s2, s2, 3'); A('    s_or_b32 s2, s2, s20')
    elif rm == 2:
        A('    s_and_b32 s20, s2, 7'); A('    s_lshl_b32 s20, s20, 1'); A('    s_bfe_u32 s21, s2, 0x10003'); A('    s_or_b32 s20, s20, s21'); A('    s_and_b32 s2, s2, 0xf0'); A('    s_or_b32 s2, s2, s20')
    elif rm == 3:
        A('    s_and_b32 s20, s2, 7', 'range index = id with bits {0..2} and {3,4} swapped (speed only)'); A('    s_lshl_b32 s20, s20, 2'); A('    s_bfe_u32 s21, s2, 0x20003'); A('    s_or_b32 s20, s20, s21'); A('    s_and_b32 s2, s2, 0xe0'); A('    s_or_b32 s2, s2, s20')
    if rm == 4:
        A('    s_and_b32 s20, s2, 7'); A('    s_lshl_b32 s20, s20, 3'); A('    s_bfe_u32 s21, s2, 0x30003'); A('    s_or_b32 s20, s20, s21'); A('    s_and_b32 s2, s2, 0xc0'); A('    s_or_b32 s2, s2, s20')
    A('    v_and_b32 v%d, 63, v0' % vC16)
    A('    v_lshrrev_b32 v%d, 6, v0' % vOFF, 'wave id')
    A('    v_lshlrev_b32 v%d, 4, v%d' % (vC16, vC16), 'lane*16')
    A('    v_readfirstlane_b32 s28, v%d' % vOFF)
    A('    v_lshlrev_b32 v%d, 12, v%d' % (vSA, vOFF), 'score area of this wave (4 KiB)')
    A('    v_lshlrev_b32 v%d, 2, v%d' % (vPGA, vOFF), 'progress word address')
    A('    s_lshr_b32 s20, s2, %d' % ps[0])
    for x in ps[1:]:
        A('    s_lshr_b32 s21, s2, %d' % x)
        A('    s_xor_b32 s20, s20, s21')
    A('    s_and_b32 s20, s20, 7')
    if b17:
        A('    s_and_b32 s21, s2, 32')
        A('    s_or_b32 s20, s20, s21')
    A('    s_lshl_b32 s20, s20, 12', 'per-workgroup xor on address bits 12..14 and 17')
    if wbl[1] == wbl[0] + 1:
        A('    v_lshlrev_b32 v%d, %d, v%d' % (vOFF, wbl[0], vOFF), 'wave id -> address bits %d,%d' % tuple(wbl))
    else:
        A('    v_and_b32 v%d, 1, v%d' % (vT, vOFF))
        A('    v_lshrrev_b32 v%d, 1, v%d' % (vOFF, vOFF))
        A('    v_lshlrev_b32 v%d, %d, v%d' % (vOFF, wbl[1], vOFF))
        A('    v_lshl_add_u32 v%d, v%d, %d, v%d' % (vOFF, vT, wbl[0], vOFF))
    A('    s_and_b32 s21, s20, 0x%x' % wmask)
    A('    v_xor_b32 v%d, s21, v%d' % (vOFF, vOFF))
    A('    v_add_u32 v%d, v%d, v%d' % (vOFF, vOFF, vC16), 'per-lane load offset')
    A('    v_lshrrev_b32 v%d, 8, v%d' % (vT, vC16), 'g')
    A('    v_lshl_add_u32 v%d, v%d, 4, v%d' % (vSA, vT, vSA))
    A('    v_and_b32 v%d, 0xf0, v%d' % (vC16, vC16), 'c*16')
    A('    s_lshl_b32 s29, s2, 20', 'K/V range of this workgroup')
    A('    s_lshl_b32 s3, s2, 9', 'q/out range')
    A('    s_and_b32 s21, s20, 0x%x' % imask)
    for u in range(8):
        A('    s_xor_b32 s%d, s21, 0x%x' % (sIN+u, inner(u)), 'offset of load %d inside a window' % u if u == 0 else None)
    A('    s_and_b32 s22, s20, 0x%x' % omask)
    A('    s_mov_b32 s23, 0', 'window counter (spread over the remaining address bits)')
    A('    s_add_u32 s21, s29, s22')
    for u in range(P0):
        A('    s_add_u32 s36, s21, s%d' % (sIN+u))
        A('    v_add_u32 v%d, s36, v%d' % (vT+u, vOFF))
    A('    v_add_u32 v%d, s3, v%d' % (vS2, vC16), 'q offset')
    A('    v_mov_b32 v%d, 0' % vPG)
    if ctl == 1: A('    v_mov_b32 v%d, 0' % vZ)
    A('    s_mov_b32 s38, 0x%08x' % cbits, 'log2(e)/sqrt(128)')
    A('    s_mov_b32 s39, 0x%08x' % cbits)
    if P0 < 8: A('    s_mov_b32 s14, %d' % SPAN); A('    s_mov_b32 s15, 0x00020000')
    A('    s_mov_b32 s18, %d' % SPAN); A('    s_mov_b32 s19, 0x00020000')
    A('    s_mov_b32 s26, 512');       A('    s_mov_b32 s27, 0x00020000')
    A('    s_mov_b32 s35, 1', 'index of the window behind s[16:19]')
    A('    v_mov_b32 v%d, 0xff800000' % vM)
    A('    s_mov_b32 s32, 0')
    A('    s_mov_b64 vcc, %d' % (-1 if v0 else 0), 'vcc != 0: deeper queue')
    if ctl:
        A('    ds_write_b32 v%d, v%d offset:%d' % (vPGA, vPG, CTL), 'progress[w] = 0')
        if ctl == 2: A('    ds_write_b32 v%d, v%d offset:%d' % (vPGA, vPG, CTL+16), 'mode[w] = 0')
        A('    s_cmp_eq_u32 s28, %d' % NW)
        A('    s_cbranch_scc1 L_ctl')
    A('    s_waitcnt lgkmcnt(0)')
    A('    global_load_dwordx4 v[%d:%d], v%d, s[4:5]' % (vQ, vQ+3, vS2))
    for u in range(P0):
        A('    global_load_dwordx4 v[%d:%d], v%d, s[6:7] nt' % (SL(u), SL(u)+3, vT+u))
    A('    global_load_dwordx4 v[%d:%d], v%d, s[4:5] offset:256' % (vQB, vQB+3, vS2))
    if P0 < 8:
        A('    s_add_u32 s12, s6, s21', 's[12:15] = first window')
        A('    s_addc_u32 s13, s7, 0')
    A('    s_add_u32 s36, s6, s29', 's[36:37] = range being streamed')
    A('    s_addc_u32 s37, s7, 0')
    A('    s_add_u32 s30, s8, s29', 's[30:31] = V range')
    A('    s_addc_u32 s31, s9, 0')
    def nextouter():
        A('    s_or_b32 s23, s23, 0x%x' % ((~omask) & 0xffffffff))
        A('    s_add_u32 s23, s23, 1')
        A('    s_and_b32 s23, s23, 0x%x' % omask)
        A('    s_cselect_b64 s[36:37], s[36:37], s[30:31]', 'wrapped: K done, continue with V')
        A('    s_xor_b32 s21, s23, s22')
        A('    s_add_u32 s16, s36, s21', 's[16:19] = window being fetched (one ahead of the one computed)')
        A('    s_addc_u32 s17, s37, 0')
    def issue(idx):
        srd = 's[12:15]' if idx < RS else 's[16:19]'
        A('    buffer_load_dwordx4 v[%d:%d], v%d, %s, s%d offen nt' % (SL(idx), SL(idx)+3, vOFF, srd, sIN + idx % RS))
    nextouter()
    A('    s_add_u32 s24, s10, s3')
    A('    s_addc_u32 s25, s11, 0')
    if ctl: A('    s_barrier', 'control words initialised')
    for u in range(P0, PL):
        A('    s_waitcnt vmcnt(%d)' % (cs-1))
        issue(u)
    lab = [0]
    def capissue(idx):
        lab[0] += 1
        if ctl:
            A('    s_waitcnt vmcnt(%d)' % (cf-1))
            A('    s_cbranch_vccnz L_f%d' % lab[0])
            A('    s_waitcnt vmcnt(%d)' % (cs-1))
            A('L_f%d:' % lab[0])
        else:
            A('    s_waitcnt vmcnt(%d)' % (cs-1))
        issue(idx)
    def advance():
        nextouter()
        A('    s_add_u32 s35, s35, 1')
        A('    s_cmp_ge_u32 s35, %d' % (4*nit))
        A('    s_cselect_b32 s18, 0, s18', 'past the end: empty descriptor, no traffic')
    A('L_khead:')
    A('    s_mov_b32 s34, %d' % nit)
    A('L_kloop:')
    if ctl: A('    ds_read_b32 v%d, v%d offset:%d' % (vMD, vPGA if ctl == 2 else vZ, CTL+16))
    for u in range(RS):
        A('    s_waitcnt vmcnt(%d)' % (PL-1))
        j = u % 4
        for q in range(4):
            A('    v_dot2_f32_bf16 v%d, v%d, v%d, %s' % (vS+j, SL(u)+q, vQ+q, ('0' if q == 0 else 'v%d' % (vS+j))))
        capissue(u + PL)
        if j == 3:
            for r in (8, 4, 2, 1):
                for jj in range(4):
                    A('    v_add_f32_dpp v%d, v%d, v%d row_ror:%d row_mask:0xf bank_mask:0xf' % (vS+jj, vS+jj, vS+jj, r))
            A('    v_pk_mul_f32 v[%d:%d], v[%d:%d], s[38:39]' % (vS, vS+1, vS, vS+1))
            A('    v_pk_mul_f32 v[%d:%d], v[%d:%d], s[38:39]' % (vS+2, vS+3, vS+2, vS+3))
            A('    v_max3_f32 v%d, v%d, v%d, v%d' % (vM, vM, vS, vS+1))
            A('    ds_write_b128 v%d, v[%d:%d] offset:%d' % (vSA, vS, vS+3, (u//4)*64))
            A('    v_max3_f32 v%d, v%d, v%d, v%d' % (vM, vM, vS+2, vS+3))
    A('    v_add_u32 v%d, 128, v%d' % (vSA, vSA))
    if ctl:
        A('    v_add_u32 v%d, 1, v%d' % (vPG, vPG))
        A('    s_waitcnt lgkmcnt(2)')
        A('    v_cmp_ne_u32 vcc, 0, v%d' % vMD)
        A('    ds_write_b32 v%d, v%d offset:%d' % (vPGA, vPG, CTL))
    advance()
    A('    s_sub_u32 s34, s34, 1'); A('    s_cmp_lg_u32 s34, 0'); A('    s_cbranch_scc1 L_kloop')
    A('    s_cmp_eq_u32 s32, 1')
    A('    s_cbranch_scc1 L_kdone')
    A('    s_mov_b32 s32, 1')
    A('    v_mov_b32 v%d, v%d' % (vMA, vM))
    for q in range(4): A('    v_mov_b32 v%d, v%d' % (vQ+q, vQB+q))
    A('    v_mov_b32 v%d, 0xff800000' % vM)
    A('    s_branch L_khead')
    A('; ---------------- phase 2: p * V ----------------')
    A('L_kdone:')
    A('    v_mov_b32 v%d, v%d' % (vMB, vM))
    A('    v_subrev_u32 v%d, %d, v%d' % (vSA, SC_BYTES//NW, vSA))
    A('    v_mov_b32 v%d, v%d' % (vM, vMA))
    vPA = vQ; vPM = vQ+1
    A('    v_lshrrev_b32 v%d, 4, v0' % vPM, 'partial index = wave*4 + g')
    A('    v_lshlrev_b32 v%d, 9, v%d' % (vPA, vPM))
    A('    v_lshl_add_u32 v%d, v%d, 1, v%d' % (vPA, vC16, vPA))
    A('    v_lshlrev_b32 v%d, 3, v%d' % (vPM, vPM))
    A('    ds_read_b128 v[%d:%d], v%d' % (vS, vS+3, vSA))
    A('    s_mov_b32 s32, 0')
    A('    s_mov_b32 s34, %d' % nit)
    A('L_vhead:')
    for i in range(8): A('    v_mov_b32 v%d, 0' % (vACC+i))
    A('    v_mov_b32 v%d, 0' % vL)
    def vbody(label, capped):
        A(label + ':')
        for u in range(RS):
            j = u % 4; t = u // 4
            cur = vS if t == 0 else vS2
            nxt = vS2 if t == 0 else vS
            if j == 0:
                A('    s_waitcnt lgkmcnt(0)')
                if ctl and capped and t == 1:
                    A('    v_cmp_ne_u32 vcc, 0, v%d' % vMD)
                for jj in range(4):
                    A('    v_sub_f32 v%d, v%d, v%d' % (cur+jj, cur+jj, vM))
                A('    ds_read_b128 v[%d:%d], v%d offset:%d' % (nxt, nxt+3, vSA, (t+1)*64))
                if ctl and capped and t == 0:
                    A('    ds_read_b32 v%d, v%d offset:%d' % (vMD, vPGA if ctl == 2 else vZ, CTL+16))
                    A('    ds_write_b32 v%d, v%d offset:%d' % (vPGA, vPG, CTL))
                    A('    v_add_u32 v%d, 1, v%d' % (vPG, vPG))
                for jj in range(4):
                    A('    v_exp_f32 v%d, v%d' % (cur+jj, cur+jj))
            A('    s_waitcnt vmcnt(%d)' % (PL-1))
            pr = cur + j; pb = pr & ~1; sel = pr & 1
            for q in range(4):
                x = SL(u) + q
                A('    v_lshlrev_b32 v%d, 16, v%d' % (vT + 2*q, x))
                A('    v_and_b32 v%d, 0xffff0000, v%d' % (vT + 2*q + 1, x))
            if not capped: issue(u + PL)
            for q in range(4):
                A('    v_pk_fma_f32 v[%d:%d], v[%d:%d], v[%d:%d], v[%d:%d] op_sel:[0,%d,0] op_sel_hi:[1,%d,1]' % (vACC+2*q, vACC+2*q+1, vT+2*q, vT+2*q+1, pb, pb+1, vACC+2*q, vACC+2*q+1, sel, sel))
            A('    v_add_f32 v%d, v%d, v%d' % (vL, vL, pr))
            if capped: capissue(u + PL)
        A('    v_add_u32 v%d, 128, v%d' % (vSA, vSA))
        advance()
        A('    s_sub_u32 s34, s34, 1'); A('    s_cmp_lg_u32 s34, 0'); A('    s_cbranch_scc1 ' + label)
    def wpart():
        A('    ds_write_b128 v%d, v[%d:%d] offset:%d' % (vPA, vACC, vACC+3, PART))
        A('    ds_write_b128 v%d, v[%d:%d] offset:%d' % (vPA, vACC+4, vACC+7, PART+16))
        A('    ds_write_b64 v%d, v[%d:%d] offset:%d' % (vPM, vM, vL, ML))
    vbody('L_vloop', True)
    A('    s_cmp_eq_u32 s32, 1')
    A('    s_cbranch_scc1 L_vtail')
    wpart()
    A('    s_mov_b32 s32, 1')
    A('    v_add_u32 v%d, %d, v%d' % (vPA, NP*512, vPA))
    A('    v_add_u32 v%d, %d, v%d' % (vPM, NP*8, vPM))
    A('    s_mov_b32 s34, %d' % (nit - tn))
    A('    v_mov_b32 v%d, v%d' % (vM, vMB))
    A('    s_branch L_vhead')
    A('L_vtail:', None)
    A('    s_mov_b32 s34, %d' % tn, 'last windows: full ring in flight')
    vbody('L_vloop2', False)
    wpart()
    A('; ---------------- merge the partials: thread t -> head t>>7, d = t&127 ----------------')
    vA = vF; vB = vF+1; vML = vF+2; vX = vF+4
    A('    v_and_b32 v%d, 127, v0' % vA)
    A('    v_lshrrev_b32 v%d, 7, v0' % vB)
    A('    v_lshlrev_b32 v%d, 2, v%d' % (vA, vA))
    A('    v_lshl_add_u32 v%d, v%d, 13, v%d' % (vA, vB, vA))
    A('    v_lshrrev_b32 v%d, 1, v%d' % (vT, vC16))
    A('    v_lshl_add_u32 v%d, v%d, 7, v%d' % (vB, vB, vT))
    A('    s_waitcnt lgkmcnt(0)')
    A('    s_barrier')
    A('    ds_read_b64 v[%d:%d], v%d offset:%d' % (vML, vML+1, vB, ML), 'lane c: (max, l) of partial c')
    for i in range(0, NP, 2):
        A('    ds_read2st64_b32 v[%d:%d], v%d offset0:%d offset1:%d' % (vX+i, vX+i+1, vA, PART//256 + 2*i, PART//256 + 2*i + 2))
    A('    s_waitcnt lgkmcnt(%d)' % (NP//2))
    A('    v_mov_b32 v%d, v%d' % (vT, vML))
    A('    s_nop 1')
    for r in (8, 4, 2, 1):
        A('    v_max_f32_dpp v%d, v%d, v%d row_ror:%d row_mask:0xf bank_mask:0xf' % (vT, vT, vT, r))
        if r != 1: A('    s_nop 1')
    A('    v_sub_f32 v%d, v%d, v%d' % (vML, vML, vT), 'partial max - row max')
    A('    v_exp_f32 v%d, v%d' % (vML, vML))
    A('    s_nop 0')
    A('    v_mul_f32 v%d, v%d, v%d' % (vT, vML, vML+1))
    A('    s_nop 1')
    for r in (8, 4, 2, 1):
        A('    v_add_f32_dpp v%d, v%d, v%d row_ror:%d row_mask:0xf bank_mask:0xf' % (vT, vT, vT, r))
        if r != 1: A('    s_nop 1')
    A('    v_rcp_f32 v%d, v%d' % (vT, vT))
    A('    v_mov_b32 v%d, 0' % (vT+1))
    A('    v_mov_b32 v%d, 0' % (vT+2))
    A('    v_lshlrev_b32 v%d, 1, v0' % vA)
    A('    s_waitcnt lgkmcnt(0)')
    for i in range(NP):
        A('    v_fmac_f32_dpp v%d, v%d, v%d row_newbcast:%d row_mask:0xf bank_mask:0xf' % (vT+1+(i % 2), vML, vX+i, i))
    A('    v_add_f32 v%d, v%d, v%d' % (vT+1, vT+1, vT+2))
    A('    v_mul_f32 v%d, v%d, v%d' % (vT+1, vT+1, vT))
    A('    v_cvt_pk_bf16_f32 v%d, v%d, v%d' % (vT+1, vT+1, vT+1))
    A('    buffer_store_short v%d, v%d, s[24:27], 0 offen' % (vT+1, vA))
    A('L_done:')
    A('    s_endpgm')
    if ctl == 2:
        A('; ---------------- wave 4: progress balancing (performance only) ----------------')
        A('; lanes 0-3 mirror waves 0-3: v4 progress, v5 window index where the deeper queue ends, v6 time at the checkpoint')
        A('; s40 checkpoint (window index), s41 ws offset of its row, s[52:53] start time of this wave')
        A('L_ctl:')
        A('    s_memrealtime s[52:53]')
        A('    v_and_b32 v8, 3, v0')
        A('    v_lshlrev_b32 v8, 2, v8')
        A('    v_mov_b32 v5, 0')
        A('    v_mov_b32 v6, 0')
        A('    s_waitcnt lgkmcnt(0)')
        A('    s_barrier')
        A('    s_mov_b32 s40, %d' % (first or ck))
        A('    s_mov_b32 s41, 0')
        A('    s_and_b32 s46, s48, 7')
        A('    s_lshr_b32 s39, s48, 7')
        A('    s_lshl_b32 s39, s39, 3')
        A('    s_or_b32 s39, s39, s46')
        A('    s_lshl_b32 s39, s39, 8', 'slot of a publishing workgroup')
        A('    s_and_b32 s47, s48, 0x%x' % (0x78 if nb == 16 else 0xf8), '0: this workgroup publishes')
        A('    s_mov_b64 exec, 15')
        def poll(label, thr, stampit):
            A(label + ':')
            A('    s_sleep 2', 'poll own workgroup progress in LDS')
            A('    ds_read_b32 v4, v8 offset:%d' % CTL)
            A('    s_waitcnt lgkmcnt(0)')
            A('    v_cmp_lt_u32 vcc, v4, v5')
            A('    s_nop 1')
            A('    v_cndmask_b32 v7, 0, 1, vcc')
            A('    v_cmp_gt_u32 vcc, %s, v4' % thr, 'waves that have not reached it yet')
            A('    ds_write_b32 v8, v7 offset:%d' % (CTL+16), 'mode[w]')
            if stampit:
                A('    s_andn2_b32 s56, exec_lo, vcc_lo')
                A('    s_and_b32 s56, s56, s42', 'waves that just passed the checkpoint')
                A('    s_cbranch_scc0 ' + label)
                A('    s_memrealtime s[54:55]')
                A('    s_mov_b32 s42, vcc_lo')
                A('    s_waitcnt lgkmcnt(0)')
                A('    s_sub_u32 s46, s54, s52')
                A('    v_mov_b32 v9, s46')
                A('    v_cndmask_b32 v6, v6, v9, s[56:57]')
            A('    s_cbranch_vccnz ' + label)
        A('    s_mov_b32 s57, 0')
        A('L_cnext:')
        A('    s_mov_b32 s42, 15')
        poll('L_cp1', 's40', True)
        A('    s_cmp_lg_u32 s47, 0')
        A('    s_cbranch_scc1 L_cnb')
        A('    s_nop 1')
        A('    v_add_u32_dpp v10, v6, v6 quad_perm:[1,0,3,2] row_mask:0xf bank_mask:0xf')
        A('    s_add_u32 s46, s41, s39')
        A('    v_mov_b32 v9, s46')
        A('    v_add_u32_dpp v10, v10, v10 quad_perm:[2,3,0,1] row_mask:0xf bank_mask:0xf')
        A('    v_mov_b32 v11, s53')
        A('    v_lshrrev_b32 v10, 2, v10', 'mean over the 4 waves')
        A('    v_add_u32 v10, s52, v10')
        A('    s_mov_b64 exec, 1')
        A('    global_store_dwordx2 v9, v[10:11], s[50:51] sc0 sc1')
        A('    s_mov_b64 exec, 15')
        A('L_cnb:')
        A('    s_add_u32 s38, s40, %d' % dly)
        poll('L_cp2', 's38', False)
        A('    s_add_u32 s60, s50, s41')
        A('    s_addc_u32 s61, s51, 0')
        for j in range(nb):
            A('    s_load_dwordx2 s[%d:%d], s[60:61], %d' % (64+2*j, 65+2*j, j*256))
        A('    s_mov_b32 s44, 0', 'sum of published times')
        A('    s_mov_b32 s46, 0', 'number of valid entries')
        A('    s_waitcnt lgkmcnt(0)')
        for j in range(nb):
            A('    s_sub_u32 s58, s%d, s52' % (64+2*j), 'valid iff written after this wave started' if j == 0 else None)
            A('    s_xor_b32 s59, s%d, s53' % (65+2*j))
            A('    s_cselect_b32 s58, -1, s58')
            A('    s_cmp_lt_u32 s58, 20000')
            A('    s_cselect_b32 s58, s58, 0')
            A('    s_addc_u32 s46, s46, 0')
            A('    s_add_u32 s44, s44, s58')
        A('    v_mul_u32_u24 v9, s46, v6')
        A('    v_subrev_u32 v9, s44, v9', 'count * lag of each wave')
        A('    v_mov_b32 v7, 0')
        for t_, n in zip(th, nf):
            A('    s_mul_i32 s59, s46, %d' % t_)
            A('    v_cmp_lt_i32 vcc, s59, v9')
            A('    s_nop 1')
            A('    v_cndmask_b32 v7, v7, %d, vcc' % n)
        A('    v_add_u32 v5, v4, v7', 'deeper queue for the next 0..%d windows' % max(nf))
        A('    s_add_u32 s40, s40, %d' % ck)
        A('    s_add_u32 s41, s41, 4096')
        A('    s_cmp_le_u32 s40, %d' % last)
        A('    s_cbranch_scc1 L_cnext')
        A('    v_cmp_lt_u32 vcc, v4, v5')
        A('    s_nop 1')
        A('    v_cndmask_b32 v7, 0, 1, vcc')
        A('    ds_write_b32 v8, v7 offset:%d' % (CTL+16))
        A('    s_endpgm')
        assert (last + dly) <= 32 + 2*nit - tn - 1
    elif ctl:
        A('; ---------------- wave 4: progress balancing (performance only) ----------------')
        A('; s40 checkpoint (sum of the 4 progress words), s41 ws offset of its row, s42 point where the deeper queue ends,')
        A('; s[52:53] start time of this wave, s45 time at which this workgroup passed the checkpoint')
        A('L_ctl:')
        A('    s_memrealtime s[52:53]')
        A('    s_waitcnt lgkmcnt(0)')
        A('    s_barrier')
        A('    s_mov_b32 s40, %d' % (ck*4))
        A('    s_mov_b32 s41, 0')
        A('    s_mov_b32 s42, -1')
        A('    s_and_b32 s46, s48, 7')
        A('    s_lshr_b32 s39, s48, 7')
        A('    s_lshl_b32 s39, s39, 3')
        A('    s_or_b32 s39, s39, s46')
        A('    s_lshl_b32 s39, s39, 8', 'slot of a publishing workgroup')
        A('    s_and_b32 s47, s48, 0x78', '0: this workgroup publishes')
        A('    s_mov_b64 exec, 1')
        def poll(label):
            A(label + ':')
            A('    s_sleep 2', 'poll own workgroup progress in LDS')
            A('    ds_read_b128 v[4:7], v%d offset:%d' % (vZ, CTL))
            A('    s_waitcnt lgkmcnt(0)')
            A('    v_add_u32 v4, v4, v5')
            A('    v_add3_u32 v4, v4, v6, v7')
            A('    s_nop 0')
            A('    v_readfirstlane_b32 s43, v4')
            A('    s_cmp_ge_u32 s43, s42')
            A('    s_cbranch_scc0 %s_nr' % label)
            A('    ds_write_b32 v%d, v%d offset:%d' % (vZ, vZ, CTL+16), 'mode = 0')
            A('    s_mov_b32 s42, -1')
            A(label + '_nr:')
            A('    s_cmp_ge_u32 s43, s38')
            A('    s_cbranch_scc0 ' + label)
        A('L_cnext:')
        A('    s_mov_b32 s44, 0')
        A('    s_sub_u32 s38, s40, 3')
        poll('L_cp1')
        A('    s_memrealtime s[54:55]')
        A('    s_waitcnt lgkmcnt(0)')
        A('    s_sub_u32 s46, s54, s52')
        A('    s_add_u32 s44, s44, s46')
        A('    s_add_u32 s38, s38, 1')
        A('    s_cmp_le_u32 s38, s40')
        A('    s_cbranch_scc1 L_cp1')
        A('    s_lshr_b32 s44, s44, 2', 'mean over the 4 waves')
        A('    s_add_u32 s45, s44, s52')
        A('    s_cmp_lg_u32 s47, 0')
        A('    s_cbranch_scc1 L_cnb')
        A('    s_add_u32 s46, s41, s39')
        A('    v_mov_b32 v9, s46')
        A('    v_mov_b32 v10, s45')
        A('    v_mov_b32 v11, s53')
        A('    global_store_dwordx2 v9, v[10:11], s[50:51] sc0 sc1')
        A('L_cnb:')
        A('    s_add_u32 s38, s40, %d' % (dly*4))
        poll('L_cp2')
        A('    s_add_u32 s60, s50, s41')
        A('    s_addc_u32 s61, s51, 0')
        for j in range(16):
            A('    s_load_dwordx2 s[%d:%d], s[60:61], %d' % (64+2*j, 65+2*j, j*256))
        A('    s_mov_b32 s44, 0', 'sum of lags')
        A('    s_mov_b32 s46, 0', 'number of valid entries')
        A('    s_waitcnt lgkmcnt(0)')
        for j in range(16):
            A('    s_sub_u32 s58, s%d, s52' % (64+2*j), 'valid iff written after this wave started' if j == 0 else None)
            A('    s_xor_b32 s59, s%d, s53' % (65+2*j))
            A('    s_cselect_b32 s58, -1, s58')
            A('    s_sub_u32 s59, s45, s%d' % (64+2*j))
            A('    s_cmp_lt_u32 s58, 20000')
            A('    s_cselect_b32 s59, s59, 0')
            A('    s_addc_u32 s46, s46, 0')
            A('    s_add_u32 s44, s44, s59')
        A('    s_mov_b32 s58, 0')
        for t_, n in zip(th, nf):
            A('    s_mul_i32 s59, s46, %d' % t_)
            A('    s_cmp_gt_i32 s44, s59')
            A('    s_cselect_b32 s58, %d, s58' % (n*4))
        A('    s_cmp_eq_u32 s58, 0')
        A('    s_cbranch_scc1 L_cnof')
        A('    s_add_u32 s42, s43, s58')
        A('    v_mov_b32 v11, 1')
        A('    ds_write_b32 v%d, v11 offset:%d' % (vZ, CTL+16), 'mode = 1 for the next windows')
        A('L_cnof:')
        A('    s_add_u32 s40, s40, %d' % (ck*4))
        A('    s_add_u32 s41, s41, 4096')
        A('    s_cmp_le_u32 s40, %d' % (last*4))
        A('    s_cbranch_scc1 L_cnext')
        A('    s_endpgm')
        assert (last + dly) <= 32 + 2*nit - tn - 1
    A('.section .rodata,"a"'); A('.p2align 6'); A('.amdhsa_kernel %s_kernel' % NAME)
    A('  .amdhsa_next_free_vgpr %d' % nv)
    A('  .amdhsa_next_free_sgpr 96')
    A('  .amdhsa_accum_offset %d' % ((nv+3)//4*4))
    A('  .amdhsa_group_segment_fixed_size 0'); A('  .amdhsa_kernarg_size 48'); A('  .amdhsa_user_sgpr_count 2')
    A('  .amdhsa_user_sgpr_kernarg_segment_ptr 1'); A('  .amdhsa_system_sgpr_workgroup_id_x 1')
    A('  .amdhsa_float_denorm_mode_32 3')
    A('.end_amdhsa_kernel')
    return '\n'.join(o) + '\n'

if __name__ == '__main__':
    import build
    args = []
    for spec in sys.argv[1:]:
        kv = dict(x.split('=') for x in spec.split(','))
        fn = 'g5_' + spec.replace('=', '').replace(',', '_').replace('.', '-') + '.s'
        kw = {}
        for k, v in kv.items():
            kw[k] = tuple(int(x) for x in v.split('.')) if k in ('th', 'nf', 'ps', 'wb', 'ib') else int(v)
        open(fn, 'w').write(gen(**kw))
        args.append(build.build(fn))
    open('args.txt', 'w').write(' '.join(args))
    open('names.txt', 'w').write(' '.join(a.split(':')[0][3:-3] for a in args))
    print(' '.join('"dev/%s",' % a.split(':')[0] for a in args))
```

```python
import sys, math, struct
NAME = "standalone__mha_softmax__sampling"

def gen(cs=5, cf=6, tn=2, ck=4, last=56, dly=2, th=(25, 55, 90), nf=(1, 2, 4), ctl=2, lds=98304, P0=8, rm=3, ps=(2, 5), v0=0, qlast=0, first=0, nb=16, wb=(11, 12), ib=(16, 10, 13), b17=1, sl=1, sth=(25, 60), ns=(1, 2)):
    NW, RS, PL = 4, 8, 8
    nit = 16
    NP = 16
    SC_BYTES = 16384
    PART = SC_BYTES
    ML = PART + 2*NP*512
    CTL = ML + 2*NP*8
    wbl = list(wb); ibl = list(ib)
    wmask = sum(1 << b for b in wbl); imask = sum(1 << b for b in ibl)
    omask = 0xffc00 & ~wmask & ~imask
    SPAN = (wmask | imask) + 1024
    def inner(u): return sum(((u >> i) & 1) << ibl[i] for i in range(3))
    nthreads = NW*64 + (64 if ctl else 0)
    o = []
    def A(s, c=None):
        o.append(s if c is None else '%-72s ; %s' % (s, c))
    for line in open('cdna_kernels/%s.s.ref' % NAME).read().split('\n'):
        if line.startswith('; @launch'): break
        A(line)
    A("; @launch grid=(256,1,1) block=(%d,1,1) lds=%d" % (nthreads, lds))
    for l in """;
; Decode attention (Sq = 1): out[h] = softmax(q[h] . K[h]^T / sqrt(128)) V[h], 512 heads, 2048 keys, D = 128.
; HBM-bound: K and V (256 MiB each) are streamed exactly once with non-temporal 16 B/lane loads.
;
; Work split: one workgroup per CU (the LDS size keeps it that way); it owns two consecutive heads = one contiguous
;   1 MiB range of K and of V.  Waves 0-3 stream; one load = 4 key rows (lane group g = lane>>4 holds one row,
;   lane c = lane&15 holds d = 8c..8c+7).
; Phase 1: all of K.  score = dot(q, k) (v_dot2 + 16-lane DPP sum), scaled to log2 units and kept in LDS, with the
;   exact running max per (wave, lane group, head).
; Phase 2: all of V.  p = exp2(score - max), acc += p * v in f32, l += p.
; End: the 16 partial (max, l, acc[128]) of each head are merged with the true row max and normalised.
;   (Reading K and V in separate phases avoids the lower DRAM efficiency seen when two buffers are interleaved.)
; Memory-level parallelism: each wave keeps 5 KiB in flight (s_waitcnt vmcnt before every issue): just enough to
;   saturate HBM; more than that makes the fabric arbitration unfair between dies and lengthens the tail.
;   The row visiting order inside a workgroup's range is a bit permutation chosen for DRAM page locality.
; Wave 4 is a helper that balances progress between workgroups inside this launch, so that all finish together:
;   16 workgroups publish when they pass each 1/16 of their work (in d_ws; entries not written by this launch are
;   ignored), every workgroup compares its waves with them and lets a lagging wave keep 6 KiB (a leading wave
;   4 KiB) in flight for a few windows.  It never affects results, and nothing ever waits on another workgroup.""".split('\n'):
        A(l)
    A('.amdgcn_target "amdgcn-amd-amdhsa--gfx950"')
    A('.text'); A('.globl %s_kernel' % NAME); A('.p2align 12'); A('.type %s_kernel,@function' % NAME)
    A('%s_kernel:' % NAME)
    vOFF = 1; vC16 = 2; vSA = 3
    vQ = 4; vQB = 8; vS = 12; vS2 = 16; vACC = 20
    vM = 28; vL = 29; vMA = 30; vMB = 31
    vT = 32
    vPG = 40; vPGA = 41; vMD = 42; vZ = 43
    vR = 44
    vF = vR + 4*RS
    nv = vF + 20
    def SL(u): return vR + 4*(u % RS)
    c = (128 ** -0.5) * math.log2(math.e)
    cbits = struct.unpack('<I', struct.pack('<f', c))[0]
    sIN = 40
    A('    s_load_dwordx8 s[4:11], s[0:1], 0', 'q, k, v, out')
    if ctl: A('    s_load_dwordx2 s[50:51], s[0:1], 40', 'ws')
    A('    s_cmp_ge_u32 s2, 256')
    A('    s_cbranch_scc1 L_done', 'extra workgroups exit')
    A('    s_mov_b32 s48, s2')
    if rm == 1:
        A('    s_and_b32 s20, s2, 7'); A('    s_lshl_b32 s20, s20, 5'); A('    s_lshr_b32 s2, s2, 3'); A('    s_or_b32 s2, s2, s20')
    elif rm == 2:
        A('    s_and_b32 s20, s2, 7'); A('    s_lshl_b32 s20, s20, 1'); A('    s_bfe_u32 s21, s2, 0x10003'); A('    s_or_b32 s20, s20, s21'); A('    s_and_b32 s2, s2, 0xf0'); A('    s_or_b32 s2, s2, s20')
    elif rm == 3:
        A('    s_and_b32 s20, s2, 7', 'range index = id with bits {0..2} and {3,4} swapped (speed only)'); A('    s_lshl_b32 s20, s20, 2'); A('    s_bfe_u32 s21, s2, 0x20003'); A('    s_or_b32 s20, s20, s21'); A('    s_and_b32 s2, s2, 0xe0'); A('    s_or_b32 s2, s2, s20')
    if rm == 4:
        A('    s_and_b32 s20, s2, 7'); A('    s_lshl_b32 s20, s20, 3'); A('    s_bfe_u32 s21, s2, 0x30003'); A('    s_or_b32 s20, s20, s21'); A('    s_and_b32 s2, s2, 0xc0'); A('    s_or_b32 s2, s2, s20')
    A('    v_and_b32 v%d, 63, v0' % vC16)
    A('    v_lshrrev_b32 v%d, 6, v0' % vOFF, 'wave id')
    A('    v_lshlrev_b32 v%d, 4, v%d' % (vC16, vC16), 'lane*16')
    A('    v_readfirstlane_b32 s28, v%d' % vOFF)
    A('    v_lshlrev_b32 v%d, 12, v%d' % (vSA, vOFF), 'score area of this wave (4 KiB)')
    A('    v_lshlrev_b32 v%d, 2, v%d' % (vPGA, vOFF), 'progress word address')
    A('    s_lshr_b32 s20, s2, %d' % ps[0])
    for x in ps[1:]:
        A('    s_lshr_b32 s21, s2, %d' % x)
        A('    s_xor_b32 s20, s20, s21')
    A('    s_and_b32 s20, s20, 7')
    if b17:
        A('    s_and_b32 s21, s2, 32')
        A('    s_or_b32 s20, s20, s21')
    A('    s_lshl_b32 s20, s20, 12', 'per-workgroup xor on address bits 12..14 and 17')
    if wbl[1] == wbl[0] + 1:
        A('    v_lshlrev_b32 v%d, %d, v%d' % (vOFF, wbl[0], vOFF), 'wave id -> address bits %d,%d' % tuple(wbl))
    else:
        A('    v_and_b32 v%d, 1, v%d' % (vT, vOFF))
        A('    v_lshrrev_b32 v%d, 1, v%d' % (vOFF, vOFF))
        A('    v_lshlrev_b32 v%d, %d, v%d' % (vOFF, wbl[1], vOFF))
        A('    v_lshl_add_u32 v%d, v%d, %d, v%d' % (vOFF, vT, wbl[0], vOFF))
    A('    s_and_b32 s21, s20, 0x%x' % wmask)
    A('    v_xor_b32 v%d, s21, v%d' % (vOFF, vOFF))
    A('    v_add_u32 v%d, v%d, v%d' % (vOFF, vOFF, vC16), 'per-lane load offset')
    A('    v_lshrrev_b32 v%d, 8, v%d' % (vT, vC16), 'g')
    A('    v_lshl_add_u32 v%d, v%d, 4, v%d' % (vSA, vT, vSA))
    A('    v_and_b32 v%d, 0xf0, v%d' % (vC16, vC16), 'c*16')
    A('    s_lshl_b32 s29, s2, 20', 'K/V range of this workgroup')
    A('    s_lshl_b32 s3, s2, 9', 'q/out range')
    A('    s_and_b32 s21, s20, 0x%x' % imask)
    for u in range(8):
        A('    s_xor_b32 s%d, s21, 0x%x' % (sIN+u, inner(u)), 'offset of load %d inside a window' % u if u == 0 else None)
    A('    s_and_b32 s22, s20, 0x%x' % omask)
    A('    s_mov_b32 s23, 0', 'window counter (spread over the remaining address bits)')
    A('    s_add_u32 s21, s29, s22')
    for u in range(P0):
        A('    s_add_u32 s36, s21, s%d' % (sIN+u))
        A('    v_add_u32 v%d, s36, v%d' % (vT+u, vOFF))
    A('    v_add_u32 v%d, s3, v%d' % (vS2, vC16), 'q offset')
    A('    v_mov_b32 v%d, 0' % vPG)
    if ctl == 1: A('    v_mov_b32 v%d, 0' % vZ)
    A('    s_mov_b32 s38, 0x%08x' % cbits, 'log2(e)/sqrt(128)')
    A('    s_mov_b32 s39, 0x%08x' % cbits)
    if P0 < 8: A('    s_mov_b32 s14, %d' % SPAN); A('    s_mov_b32 s15, 0x00020000')
    A('    s_mov_b32 s18, %d' % SPAN); A('    s_mov_b32 s19, 0x00020000')
    A('    s_mov_b32 s26, 512');       A('    s_mov_b32 s27, 0x00020000')
    A('    s_mov_b32 s35, 1', 'index of the window behind s[16:19]')
    A('    s_mov_b32 s49, 0xffff0000')
    A('    v_mov_b32 v%d, 0xff800000' % vM)
    A('    s_mov_b32 s32, 0')
    if sl: A('    s_mov_b32 s33, 0')
    A('    s_mov_b64 vcc, %d' % (-1 if v0 else 0), 'loops: vcc != 0 -> 6 KiB in flight, scc = 1 -> 4 KiB, else 5 KiB')
    if ctl:
        A('    ds_write_b32 v%d, v%d offset:%d' % (vPGA, vPG, CTL), 'progress[w] = 0')
        if ctl == 2: A('    ds_write_b32 v%d, v%d offset:%d' % (vPGA, vPG, CTL+16), 'mode[w] = 0')
        A('    s_cmp_eq_u32 s28, %d' % NW)
        A('    s_cbranch_scc1 L_ctl')
    A('    s_waitcnt lgkmcnt(0)')
    A('    global_load_dwordx4 v[%d:%d], v%d, s[4:5]' % (vQ, vQ+3, vS2))
    for u in range(P0):
        A('    global_load_dwordx4 v[%d:%d], v%d, s[6:7] nt' % (SL(u), SL(u)+3, vT+u))
    A('    global_load_dwordx4 v[%d:%d], v%d, s[4:5] offset:256' % (vQB, vQB+3, vS2))
    if P0 < 8:
        A('    s_add_u32 s12, s6, s21', 's[12:15] = first window')
        A('    s_addc_u32 s13, s7, 0')
    A('    s_add_u32 s36, s6, s29', 's[36:37] = range being streamed')
    A('    s_addc_u32 s37, s7, 0')
    A('    s_add_u32 s30, s8, s29', 's[30:31] = V range')
    A('    s_addc_u32 s31, s9, 0')
    def nextouter():
        A('    s_or_b32 s23, s23, 0x%x' % ((~omask) & 0xffffffff))
        A('    s_add_u32 s23, s23, 1')
        A('    s_and_b32 s23, s23, 0x%x' % omask)
        A('    s_cselect_b64 s[36:37], s[36:37], s[30:31]', 'wrapped: K done, continue with V')
        A('    s_xor_b32 s21, s23, s22')
        A('    s_add_u32 s16, s36, s21', 's[16:19] = window being fetched (one ahead of the one computed)')
        A('    s_addc_u32 s17, s37, 0')
    def issue(idx):
        srd = 's[12:15]' if idx < RS else 's[16:19]'
        A('    buffer_load_dwordx4 v[%d:%d], v%d, %s, s%d offen nt' % (SL(idx), SL(idx)+3, vOFF, srd, sIN + idx % RS))
    nextouter()
    A('    s_add_u32 s24, s10, s3')
    A('    s_addc_u32 s25, s11, 0')
    if ctl: A('    s_barrier', 'control words initialised')
    for u in range(P0, PL):
        A('    s_waitcnt vmcnt(%d)' % (cs-1))
        issue(u)
    lab = [0]
    def capissue(idx):
        lab[0] += 1
        if ctl:
            A('    s_waitcnt vmcnt(%d)' % (cf-1))
            A('    s_cbranch_vccnz L_f%d' % lab[0])
            A('    s_waitcnt vmcnt(%d)' % (cs-1))
            if sl:
                A('    s_cbranch_scc0 L_f%d' % lab[0])
                A('    s_waitcnt vmcnt(%d)' % (cs-2))
            A('L_f%d:' % lab[0])
        else:
            A('    s_waitcnt vmcnt(%d)' % (cs-1))
        issue(idx)
    def advance():
        nextouter()
        A('    s_add_u32 s35, s35, 1')
        A('    s_cmp_ge_u32 s35, %d' % (4*nit))
        A('    s_cselect_b32 s18, 0, s18', 'past the end: empty descriptor, no traffic')
    A('L_khead:')
    A('    s_mov_b32 s34, %d' % nit)
    A('L_kloop:')
    if sl: A('    s_cmp_eq_u32 s33, 2')
    if ctl: A('    ds_read_b32 v%d, v%d offset:%d' % (vMD, vPGA if ctl == 2 else vZ, CTL+16))
    for u in range(RS):
        A('    s_waitcnt vmcnt(%d)' % (PL-1))
        j = u % 4
        for q in range(4):
            A('    v_dot2_f32_bf16 v%d, v%d, v%d, %s' % (vS+j, SL(u)+q, vQ+q, ('0' if q == 0 else 'v%d' % (vS+j))))
        capissue(u + PL)
        if j == 3:
            for r in (8, 4, 2, 1):
                for jj in range(4):
                    A('    v_add_f32_dpp v%d, v%d, v%d row_ror:%d row_mask:0xf bank_mask:0xf' % (vS+jj, vS+jj, vS+jj, r))
            A('    v_pk_mul_f32 v[%d:%d], v[%d:%d], s[38:39]' % (vS, vS+1, vS, vS+1))
            A('    v_pk_mul_f32 v[%d:%d], v[%d:%d], s[38:39]' % (vS+2, vS+3, vS+2, vS+3))
            A('    v_max3_f32 v%d, v%d, v%d, v%d' % (vM, vM, vS, vS+1))
            A('    ds_write_b128 v%d, v[%d:%d] offset:%d' % (vSA, vS, vS+3, (u//4)*64))
            A('    v_max3_f32 v%d, v%d, v%d, v%d' % (vM, vM, vS+2, vS+3))
    A('    v_add_u32 v%d, 128, v%d' % (vSA, vSA))
    if ctl:
        A('    v_add_u32 v%d, 1, v%d' % (vPG, vPG))
        A('    s_waitcnt lgkmcnt(2)')
        A('    v_cmp_eq_u32 vcc, 1, v%d' % vMD)
        if sl: A('    v_readfirstlane_b32 s33, v%d' % vMD)
        A('    ds_write_b32 v%d, v%d offset:%d' % (vPGA, vPG, CTL))
    advance()
    A('    s_sub_u32 s34, s34, 1'); A('    s_cmp_lg_u32 s34, 0'); A('    s_cbranch_scc1 L_kloop')
    A('    s_cmp_eq_u32 s32, 1')
    A('    s_cbranch_scc1 L_kdone')
    A('    s_mov_b32 s32, 1')
    A('    v_mov_b32 v%d, v%d' % (vMA, vM))
    for q in range(4): A('    v_mov_b32 v%d, v%d' % (vQ+q, vQB+q))
    A('    v_mov_b32 v%d, 0xff800000' % vM)
    A('    s_branch L_khead')
    A('; ---------------- phase 2: p * V ----------------')
    A('L_kdone:')
    A('    v_mov_b32 v%d, v%d' % (vMB, vM))
    A('    v_subrev_u32 v%d, %d, v%d' % (vSA, SC_BYTES//NW, vSA))
    A('    v_mov_b32 v%d, v%d' % (vM, vMA))
    vPA = vQ; vPM = vQ+1
    A('    v_lshrrev_b32 v%d, 4, v0' % vPM, 'partial index = wave*4 + g')
    A('    v_lshlrev_b32 v%d, 9, v%d' % (vPA, vPM))
    A('    v_lshl_add_u32 v%d, v%d, 1, v%d' % (vPA, vC16, vPA))
    A('    v_lshlrev_b32 v%d, 3, v%d' % (vPM, vPM))
    A('    ds_read_b128 v[%d:%d], v%d' % (vS, vS+3, vSA))
    A('    s_mov_b32 s32, 0')
    A('    s_mov_b32 s34, %d' % nit)
    A('L_vhead:')
    for i in range(8): A('    v_mov_b32 v%d, 0' % (vACC+i))
    A('    v_mov_b32 v%d, 0' % vL)
    def vbody(label, capped):
        A(label + ':')
        if sl and capped: A('    s_cmp_eq_u32 s33, 2')
        for u in range(RS):
            j = u % 4; t = u // 4
            cur = vS if t == 0 else vS2
            nxt = vS2 if t == 0 else vS
            if j == 0:
                A('    s_waitcnt lgkmcnt(0)')
                if ctl and capped and t == 1:
                    A('    v_cmp_eq_u32 vcc, 1, v%d' % vMD)
                    if sl:
                        A('    v_readfirstlane_b32 s33, v%d' % vMD)
                        A('    s_cmp_eq_u32 s33, 2')
                for jj in range(4):
                    A('    v_sub_f32 v%d, v%d, v%d' % (cur+jj, cur+jj, vM))
                A('    ds_read_b128 v[%d:%d], v%d offset:%d' % (nxt, nxt+3, vSA, (t+1)*64))
                if ctl and capped and t == 0:
                    A('    ds_read_b32 v%d, v%d offset:%d' % (vMD, vPGA if ctl == 2 else vZ, CTL+16))
                    A('    ds_write_b32 v%d, v%d offset:%d' % (vPGA, vPG, CTL))
                    A('    v_add_u32 v%d, 1, v%d' % (vPG, vPG))
                for jj in range(4):
                    A('    v_exp_f32 v%d, v%d' % (cur+jj, cur+jj))
            A('    s_waitcnt vmcnt(%d)' % (PL-1))
            pr = cur + j; pb = pr & ~1; sel = pr & 1
            for q in range(4):
                x = SL(u) + q
                A('    v_lshlrev_b32 v%d, 16, v%d' % (vT + 2*q, x))
                A('    v_and_b32 v%d, s49, v%d' % (vT + 2*q + 1, x))
            if not capped: issue(u + PL)
            for q in range(4):
                A('    v_pk_fma_f32 v[%d:%d], v[%d:%d], v[%d:%d], v[%d:%d] op_sel:[0,%d,0] op_sel_hi:[1,%d,1]' % (vACC+2*q, vACC+2*q+1, vT+2*q, vT+2*q+1, pb, pb+1, vACC+2*q, vACC+2*q+1, sel, sel))
            A('    v_add_f32 v%d, v%d, v%d' % (vL, vL, pr))
            if capped: capissue(u + PL)
        A('    v_add_u32 v%d, 128, v%d' % (vSA, vSA))
        advance()
        A('    s_sub_u32 s34, s34, 1'); A('    s_cmp_lg_u32 s34, 0'); A('    s_cbranch_scc1 ' + label)
    def wpart():
        A('    ds_write_b128 v%d, v[%d:%d] offset:%d' % (vPA, vACC, vACC+3, PART))
        A('    ds_write_b128 v%d, v[%d:%d] offset:%d' % (vPA, vACC+4, vACC+7, PART+16))
        A('    ds_write_b64 v%d, v[%d:%d] offset:%d' % (vPM, vM, vL, ML))
    vbody('L_vloop', True)
    A('    s_cmp_eq_u32 s32, 1')
    A('    s_cbranch_scc1 L_vtail')
    wpart()
    A('    s_mov_b32 s32, 1')
    A('    v_add_u32 v%d, %d, v%d' % (vPA, NP*512, vPA))
    A('    v_add_u32 v%d, %d, v%d' % (vPM, NP*8, vPM))
    A('    s_mov_b32 s34, %d' % (nit - tn))
    A('    v_mov_b32 v%d, v%d' % (vM, vMB))
    A('    s_branch L_vhead')
    A('L_vtail:', None)
    A('    s_mov_b32 s34, %d' % tn, 'last windows: full ring in flight')
    vbody('L_vloop2', False)
    wpart()
    A('; ---------------- merge the partials: thread t -> head t>>7, d = t&127 ----------------')
    vA = vF; vB = vF+1; vML = vF+2; vX = vF+4
    A('    v_and_b32 v%d, 127, v0' % vA)
    A('    v_lshrrev_b32 v%d, 7, v0' % vB)
    A('    v_lshlrev_b32 v%d, 2, v%d' % (vA, vA))
    A('    v_lshl_add_u32 v%d, v%d, 13, v%d' % (vA, vB, vA))
    A('    v_lshrrev_b32 v%d, 1, v%d' % (vT, vC16))
    A('    v_lshl_add_u32 v%d, v%d, 7, v%d' % (vB, vB, vT))
    A('    s_waitcnt lgkmcnt(0)')
    A('    s_barrier')
    A('    ds_read_b64 v[%d:%d], v%d offset:%d' % (vML, vML+1, vB, ML), 'lane c: (max, l) of partial c')
    for i in range(0, NP, 2):
        A('    ds_read2st64_b32 v[%d:%d], v%d offset0:%d offset1:%d' % (vX+i, vX+i+1, vA, PART//256 + 2*i, PART//256 + 2*i + 2))
    A('    s_waitcnt lgkmcnt(%d)' % (NP//2))
    A('    v_mov_b32 v%d, v%d' % (vT, vML))
    A('    s_nop 1')
    for r in (8, 4, 2, 1):
        A('    v_max_f32_dpp v%d, v%d, v%d row_ror:%d row_mask:0xf bank_mask:0xf' % (vT, vT, vT, r))
        if r != 1: A('    s_nop 1')
    A('    v_sub_f32 v%d, v%d, v%d' % (vML, vML, vT), 'partial max - row max')
    A('    v_exp_f32 v%d, v%d' % (vML, vML))
    A('    s_nop 0')
    A('    v_mul_f32 v%d, v%d, v%d' % (vT, vML, vML+1))
    A('    s_nop 1')
    for r in (8, 4, 2, 1):
        A('    v_add_f32_dpp v%d, v%d, v%d row_ror:%d row_mask:0xf bank_mask:0xf' % (vT, vT, vT, r))
        if r != 1: A('    s_nop 1')
    A('    v_rcp_f32 v%d, v%d' % (vT, vT))
    A('    v_mov_b32 v%d, 0' % (vT+1))
    A('    v_mov_b32 v%d, 0' % (vT+2))
    A('    v_lshlrev_b32 v%d, 1, v0' % vA)
    A('    s_waitcnt lgkmcnt(0)')
    for i in range(NP):
        A('    v_fmac_f32_dpp v%d, v%d, v%d row_newbcast:%d row_mask:0xf bank_mask:0xf' % (vT+1+(i % 2), vML, vX+i, i))
    A('    v_add_f32 v%d, v%d, v%d' % (vT+1, vT+1, vT+2))
    A('    v_mul_f32 v%d, v%d, v%d' % (vT+1, vT+1, vT))
    A('    v_cvt_pk_bf16_f32 v%d, v%d, v%d' % (vT+1, vT+1, vT+1))
    A('    buffer_store_short v%d, v%d, s[24:27], 0 offen' % (vT+1, vA))
    A('L_done:')
    A('    s_endpgm')
    if ctl == 2:
        A('; ---------------- wave 4: progress balancing (performance only) ----------------')
        A('; lanes 0-3 mirror waves 0-3: v4 progress, v12 mode (1: 6 KiB, 2: 4 KiB) valid while v4 < v5, v6 time at the checkpoint')
        A('; s40 checkpoint (window index), s41 ws offset of its row, s[52:53] start time of this wave')
        A('L_ctl:')
        A('    s_memrealtime s[52:53]')
        A('    v_and_b32 v8, 3, v0')
        A('    v_lshlrev_b32 v8, 2, v8')
        A('    v_mov_b32 v5, 0')
        A('    v_mov_b32 v6, 0')
        A('    v_mov_b32 v12, 1')
        A('    s_waitcnt lgkmcnt(0)')
        A('    s_barrier')
        A('    s_mov_b32 s40, %d' % (first or ck))
        A('    s_mov_b32 s41, 0')
        A('    s_and_b32 s46, s48, 7')
        A('    s_lshr_b32 s39, s48, 7')
        A('    s_lshl_b32 s39, s39, 3')
        A('    s_or_b32 s39, s39, s46')
        A('    s_lshl_b32 s39, s39, 8', 'slot of a publishing workgroup')
        A('    s_and_b32 s47, s48, 0x%x' % (0x78 if nb == 16 else 0xf8), '0: this workgroup publishes')
        A('    s_mov_b64 exec, 15')
        def poll(label, thr, stampit):
            A(label + ':')
            A('    s_sleep 2', 'poll own workgroup progress in LDS')
            A('    ds_read_b32 v4, v8 offset:%d' % CTL)
            A('    s_waitcnt lgkmcnt(0)')
            A('    v_cmp_lt_u32 vcc, v4, v5')
            A('    s_nop 1')
            A('    v_cndmask_b32 v7, 0, v12, vcc')
            A('    v_cmp_gt_u32 vcc, %s, v4' % thr, 'waves that have not reached it yet')
            A('    ds_write_b32 v8, v7 offset:%d' % (CTL+16), 'mode[w]')
            if stampit:
                A('    s_andn2_b32 s56, exec_lo, vcc_lo')
                A('    s_and_b32 s56, s56, s42', 'waves that just passed the checkpoint')
                A('    s_cbranch_scc0 ' + label)
                A('    s_memrealtime s[54:55]')
                A('    s_mov_b32 s42, vcc_lo')
                A('    s_waitcnt lgkmcnt(0)')
                A('    s_sub_u32 s46, s54, s52')
                A('    v_mov_b32 v9, s46')
                A('    v_cndmask_b32 v6, v6, v9, s[56:57]')
            A('    s_cbranch_vccnz ' + label)
        A('    s_mov_b32 s57, 0')
        A('L_cnext:')
        A('    s_mov_b32 s42, 15')
        poll('L_cp1', 's40', True)
        A('    s_cmp_lg_u32 s47, 0')
        A('    s_cbranch_scc1 L_cnb')
        A('    s_nop 1')
        A('    v_add_u32_dpp v10, v6, v6 quad_perm:[1,0,3,2] row_mask:0xf bank_mask:0xf')
        A('    s_add_u32 s46, s41, s39')
        A('    v_mov_b32 v9, s46')
        A('    v_add_u32_dpp v10, v10, v10 quad_perm:[2,3,0,1] row_mask:0xf bank_mask:0xf')
        A('    v_mov_b32 v11, s53')
        A('    v_lshrrev_b32 v10, 2, v10', 'mean over the 4 waves')
        A('    v_add_u32 v10, s52, v10')
        A('    s_mov_b64 exec, 1')
        A('    global_store_dwordx2 v9, v[10:11], s[50:51] sc0 sc1')
        A('    s_mov_b64 exec, 15')
        A('L_cnb:')
        A('    s_add_u32 s38, s40, %d' % dly)
        poll('L_cp2', 's38', False)
        A('    s_add_u32 s60, s50, s41')
        A('    s_addc_u32 s61, s51, 0')
        for j in range(nb):
            A('    s_load_dwordx2 s[%d:%d], s[60:61], %d' % (64+2*j, 65+2*j, j*256))
        A('    s_mov_b32 s44, 0', 'sum of published times')
        A('    s_mov_b32 s46, 0', 'number of valid entries')
        A('    s_waitcnt lgkmcnt(0)')
        for j in range(nb):
            A('    s_sub_u32 s58, s%d, s52' % (64+2*j), 'valid iff written after this wave started' if j == 0 else None)
            A('    s_xor_b32 s59, s%d, s53' % (65+2*j))
            A('    s_cselect_b32 s58, -1, s58')
            A('    s_cmp_lt_u32 s58, 20000')
            A('    s_cselect_b32 s58, s58, 0')
            A('    s_addc_u32 s46, s46, 0')
            A('    s_add_u32 s44, s44, s58')
        A('    v_mul_u32_u24 v9, s46, v6')
        A('    v_subrev_u32 v9, s44, v9', 'count * lag of each wave')
        A('    v_mov_b32 v7, 0')
        for t_, n in zip(th, nf):
            A('    s_mul_i32 s59, s46, %d' % t_)
            A('    v_cmp_lt_i32 vcc, s59, v9')
            A('    s_nop 1')
            A('    v_cndmask_b32 v7, v7, %d, vcc' % n)
        if sl:
            A('    v_mov_b32 v12, 1')
            for t_, n in zip(sth, ns):
                A('    s_mul_i32 s59, s46, %d' % (-t_))
                A('    v_cmp_gt_i32 vcc, s59, v9')
                A('    s_nop 1')
                A('    v_cndmask_b32 v7, v7, %d, vcc' % n)
                A('    v_cndmask_b32 v12, v12, 2, vcc')
        A('    v_add_u32 v5, v4, v7', 'mode holds for the next 0..%d windows' % max(nf))
        A('    s_add_u32 s40, s40, %d' % ck)
        A('    s_add_u32 s41, s41, 4096')
        A('    s_cmp_le_u32 s40, %d' % last)
        A('    s_cbranch_scc1 L_cnext')
        A('    v_cmp_lt_u32 vcc, v4, v5')
        A('    s_nop 1')
        A('    v_cndmask_b32 v7, 0, v12, vcc')
        if sl: A('    v_and_b32 v7, 1, v7')
        A('    ds_write_b32 v8, v7 offset:%d' % (CTL+16))
        A('    s_endpgm')
        assert (last + dly) <= 32 + 2*nit - tn - 1
    elif ctl:
        A('; ---------------- wave 4: progress balancing (performance only) ----------------')
        A('; s40 checkpoint (sum of the 4 progress words), s41 ws offset of its row, s42 point where the deeper queue ends,')
        A('; s[52:53] start time of this wave, s45 time at which this workgroup passed the checkpoint')
        A('L_ctl:')
        A('    s_memrealtime s[52:53]')
        A('    s_waitcnt lgkmcnt(0)')
        A('    s_barrier')
        A('    s_mov_b32 s40, %d' % (ck*4))
        A('    s_mov_b32 s41, 0')
        A('    s_mov_b32 s42, -1')
        A('    s_and_b32 s46, s48, 7')
        A('    s_lshr_b32 s39, s48, 7')
        A('    s_lshl_b32 s39, s39, 3')
        A('    s_or_b32 s39, s39, s46')
        A('    s_lshl_b32 s39, s39, 8', 'slot of a publishing workgroup')
        A('    s_and_b32 s47, s48, 0x78', '0: this workgroup publishes')
        A('    s_mov_b64 exec, 1')
        def poll(label):
            A(label + ':')
            A('    s_sleep 2', 'poll own workgroup progress in LDS')
            A('    ds_read_b128 v[4:7], v%d offset:%d' % (vZ, CTL))
            A('    s_waitcnt lgkmcnt(0)')
            A('    v_add_u32 v4, v4, v5')
            A('    v_add3_u32 v4, v4, v6, v7')
            A('    s_nop 0')
            A('    v_readfirstlane_b32 s43, v4')
            A('    s_cmp_ge_u32 s43, s42')
            A('    s_cbranch_scc0 %s_nr' % label)
            A('    ds_write_b32 v%d, v%d offset:%d' % (vZ, vZ, CTL+16), 'mode = 0')
            A('    s_mov_b32 s42, -1')
            A(label + '_nr:')
            A('    s_cmp_ge_u32 s43, s38')
            A('    s_cbranch_scc0 ' + label)
        A('L_cnext:')
        A('    s_mov_b32 s44, 0')
        A('    s_sub_u32 s38, s40, 3')
        poll('L_cp1')
        A('    s_memrealtime s[54:55]')
        A('    s_waitcnt lgkmcnt(0)')
        A('    s_sub_u32 s46, s54, s52')
        A('    s_add_u32 s44, s44, s46')
        A('    s_add_u32 s38, s38, 1')
        A('    s_cmp_le_u32 s38, s40')
        A('    s_cbranch_scc1 L_cp1')
        A('    s_lshr_b32 s44, s44, 2', 'mean over the 4 waves')
        A('    s_add_u32 s45, s44, s52')
        A('    s_cmp_lg_u32 s47, 0')
        A('    s_cbranch_scc1 L_cnb')
        A('    s_add_u32 s46, s41, s39')
        A('    v_mov_b32 v9, s46')
        A('    v_mov_b32 v10, s45')
        A('    v_mov_b32 v11, s53')
        A('    global_store_dwordx2 v9, v[10:11], s[50:51] sc0 sc1')
        A('L_cnb:')
        A('    s_add_u32 s38, s40, %d' % (dly*4))
        poll('L_cp2')
        A('    s_add_u32 s60, s50, s41')
        A('    s_addc_u32 s61, s51, 0')
        for j in range(16):
            A('    s_load_dwordx2 s[%d:%d], s[60:61], %d' % (64+2*j, 65+2*j, j*256))
        A('    s_mov_b32 s44, 0', 'sum of lags')
        A('    s_mov_b32 s46, 0', 'number of valid entries')
        A('    s_waitcnt lgkmcnt(0)')
        for j in range(16):
            A('    s_sub_u32 s58, s%d, s52' % (64+2*j), 'valid iff written after this wave started' if j == 0 else None)
            A('    s_xor_b32 s59, s%d, s53' % (65+2*j))
            A('    s_cselect_b32 s58, -1, s58')
            A('    s_sub_u32 s59, s45, s%d' % (64+2*j))
            A('    s_cmp_lt_u32 s58, 20000')
            A('    s_cselect_b32 s59, s59, 0')
            A('    s_addc_u32 s46, s46, 0')
            A('    s_add_u32 s44, s44, s59')
        A('    s_mov_b32 s58, 0')
        for t_, n in zip(th, nf):
            A('    s_mul_i32 s59, s46, %d' % t_)
            A('    s_cmp_gt_i32 s44, s59')
            A('    s_cselect_b32 s58, %d, s58' % (n*4))
        A('    s_cmp_eq_u32 s58, 0')
        A('    s_cbranch_scc1 L_cnof')
        A('    s_add_u32 s42, s43, s58')
        A('    v_mov_b32 v11, 1')
        A('    ds_write_b32 v%d, v11 offset:%d' % (vZ, CTL+16), 'mode = 1 for the next windows')
        A('L_cnof:')
        A('    s_add_u32 s40, s40, %d' % (ck*4))
        A('    s_add_u32 s41, s41, 4096')
        A('    s_cmp_le_u32 s40, %d' % (last*4))
        A('    s_cbranch_scc1 L_cnext')
        A('    s_endpgm')
        assert (last + dly) <= 32 + 2*nit - tn - 1
    A('.section .rodata,"a"'); A('.p2align 6'); A('.amdhsa_kernel %s_kernel' % NAME)
    A('  .amdhsa_next_free_vgpr %d' % nv)
    A('  .amdhsa_next_free_sgpr 96')
    A('  .amdhsa_accum_offset %d' % ((nv+3)//4*4))
    A('  .amdhsa_group_segment_fixed_size 0'); A('  .amdhsa_kernarg_size 48'); A('  .amdhsa_user_sgpr_count 2')
    A('  .amdhsa_user_sgpr_kernarg_segment_ptr 1'); A('  .amdhsa_system_sgpr_workgroup_id_x 1')
    A('  .amdhsa_float_denorm_mode_32 3')
    A('.end_amdhsa_kernel')
    return '\n'.join(o) + '\n'

if __name__ == '__main__':
    import build
    args = []
    for spec in sys.argv[1:]:
        kv = dict(x.split('=') for x in spec.split(','))
        fn = 'g5_' + spec.replace('=', '').replace(',', '_').replace('.', '-') + '.s'
        kw = {}
        for k, v in kv.items():
            kw[k] = tuple(int(x) for x in v.split('.')) if k in ('th', 'nf', 'ps', 'wb', 'ib', 'sth', 'ns') else int(v)
        open(fn, 'w').write(gen(**kw))
        args.append(build.build(fn))
    open('args.txt', 'w').write(' '.join(args))
    open('names.txt', 'w').write(' '.join(a.split(':')[0][3:-3] for a in args))
    print(' '.join('"dev/%s",' % a.split(':')[0] for a in args))
```

```python
import sys, math, struct
NAME = "standalone__mha_softmax__sampling"

def gen(cs=5, cf=6, tn=2, ck=4, last=56, dly=2, th=(25, 55, 90), nf=(1, 2, 4), ctl=2, lds=98304, P0=8, rm=3, ps=(2, 5), v0=1, qlast=0, vt=0, slp=2, prio=0, first=0, nb=16, wb=(11, 12), ib=(16, 10, 13), b17=1, sl=1, sth=(25, 60), ns=(1, 2)):
    NW, RS, PL = 4, 8, 8
    nit = 16
    NP = 16
    SC_BYTES = 16384
    PART = SC_BYTES
    ML = PART + 2*NP*512
    CTL = ML + 2*NP*8
    wbl = list(wb); ibl = list(ib)
    wmask = sum(1 << b for b in wbl); imask = sum(1 << b for b in ibl)
    omask = 0xffc00 & ~wmask & ~imask
    SPAN = (wmask | imask) + 1024
    def inner(u): return sum(((u >> i) & 1) << ibl[i] for i in range(3))
    nthreads = NW*64 + (64 if ctl else 0)
    o = []
    def A(s, c=None):
        o.append(s if c is None else '%-72s ; %s' % (s, c))
    for line in open('cdna_kernels/%s.s.ref' % NAME).read().split('\n'):
        if line.startswith('; @launch'): break
        A(line)
    A("; @launch grid=(256,1,1) block=(%d,1,1) lds=%d" % (nthreads, lds))
    for l in """;
; Decode attention (Sq = 1): out[h] = softmax(q[h] . K[h]^T / sqrt(128)) V[h], 512 heads, 2048 keys, D = 128.
; HBM-bound: K and V (256 MiB each) are streamed exactly once with non-temporal 16 B/lane loads.
;
; Work split: one workgroup per CU (the LDS size keeps it that way); it owns two consecutive heads = one contiguous
;   1 MiB range of K and of V.  Waves 0-3 stream; one load = 4 key rows (lane group g = lane>>4 holds one row,
;   lane c = lane&15 holds d = 8c..8c+7).
; Phase 1: all of K.  score = dot(q, k) (v_dot2 + 16-lane DPP sum), scaled to log2 units and kept in LDS, with the
;   exact running max per (wave, lane group, head).
; Phase 2: all of V.  p = exp2(score - max), acc += p * v in f32, l += p.
; End: the 16 partial (max, l, acc[128]) of each head are merged with the true row max and normalised.
;   (Reading K and V in separate phases avoids the lower DRAM efficiency seen when two buffers are interleaved.)
; Memory-level parallelism: each wave keeps 5 KiB in flight (s_waitcnt vmcnt before every issue): just enough to
;   saturate HBM; more than that makes the fabric arbitration unfair between dies and lengthens the tail.
;   The row visiting order inside a workgroup's range is a bit permutation chosen for DRAM page locality.
; Wave 4 is a helper that balances progress between workgroups inside this launch, so that all finish together:
;   16 workgroups publish when they pass each 1/16 of their work (in d_ws; entries not written by this launch are
;   ignored), every workgroup compares its waves with them and lets a lagging wave keep 6 KiB (a leading wave
;   4 KiB) in flight for a few windows.  It never affects results, and nothing ever waits on another workgroup.""".split('\n'):
        A(l)
    A('.amdgcn_target "amdgcn-amd-amdhsa--gfx950"')
    A('.text'); A('.globl %s_kernel' % NAME); A('.p2align 12'); A('.type %s_kernel,@function' % NAME)
    A('%s_kernel:' % NAME)
    vOFF = 1; vC16 = 2; vSA = 3
    vQ = 4; vQB = 8; vS = 12; vS2 = 16; vACC = 20
    vM = 28; vL = 29; vMA = 30; vMB = 31
    vT = 32
    vPG = 40; vPGA = 41; vMD = 42; vZ = 43
    vR = 44
    vF = vR + 4*RS
    nv = vF + 20
    def SL(u): return vR + 4*(u % RS)
    c = (128 ** -0.5) * math.log2(math.e)
    cbits = struct.unpack('<I', struct.pack('<f', c))[0]
    sIN = 40
    A('    s_load_dwordx8 s[4:11], s[0:1], 0', 'q, k, v, out')
    if ctl: A('    s_load_dwordx2 s[50:51], s[0:1], 40', 'ws')
    A('    s_cmp_ge_u32 s2, 256')
    A('    s_cbranch_scc1 L_done', 'extra workgroups exit')
    A('    s_mov_b32 s48, s2')
    if rm == 1:
        A('    s_and_b32 s20, s2, 7'); A('    s_lshl_b32 s20, s20, 5'); A('    s_lshr_b32 s2, s2, 3'); A('    s_or_b32 s2, s2, s20')
    elif rm == 2:
        A('    s_and_b32 s20, s2, 7'); A('    s_lshl_b32 s20, s20, 1'); A('    s_bfe_u32 s21, s2, 0x10003'); A('    s_or_b32 s20, s20, s21'); A('    s_and_b32 s2, s2, 0xf0'); A('    s_or_b32 s2, s2, s20')
    elif rm == 3:
        A('    s_and_b32 s20, s2, 7', 'range index = id with bits {0..2} and {3,4} swapped (speed only)'); A('    s_lshl_b32 s20, s20, 2'); A('    s_bfe_u32 s21, s2, 0x20003'); A('    s_or_b32 s20, s20, s21'); A('    s_and_b32 s2, s2, 0xe0'); A('    s_or_b32 s2, s2, s20')
    if rm == 4:
        A('    s_and_b32 s20, s2, 7'); A('    s_lshl_b32 s20, s20, 3'); A('    s_bfe_u32 s21, s2, 0x30003'); A('    s_or_b32 s20, s20, s21'); A('    s_and_b32 s2, s2, 0xc0'); A('    s_or_b32 s2, s2, s20')
    A('    v_and_b32 v%d, 63, v0' % vC16)
    A('    v_lshrrev_b32 v%d, 6, v0' % vOFF, 'wave id')
    A('    v_lshlrev_b32 v%d, 4, v%d' % (vC16, vC16), 'lane*16')
    A('    v_readfirstlane_b32 s28, v%d' % vOFF)
    A('    v_lshlrev_b32 v%d, 12, v%d' % (vSA, vOFF), 'score area of this wave (4 KiB)')
    A('    v_lshlrev_b32 v%d, 2, v%d' % (vPGA, vOFF), 'progress word address')
    A('    s_lshr_b32 s20, s2, %d' % ps[0])
    for x in ps[1:]:
        A('    s_lshr_b32 s21, s2, %d' % x)
        A('    s_xor_b32 s20, s20, s21')
    A('    s_and_b32 s20, s20, 7')
    if b17:
        A('    s_and_b32 s21, s2, 32')
        A('    s_or_b32 s20, s20, s21')
    A('    s_lshl_b32 s20, s20, 12', 'per-workgroup xor on address bits 12..14 and 17')
    if wbl[1] == wbl[0] + 1:
        A('    v_lshlrev_b32 v%d, %d, v%d' % (vOFF, wbl[0], vOFF), 'wave id -> address bits %d,%d' % tuple(wbl))
    else:
        A('    v_and_b32 v%d, 1, v%d' % (vT, vOFF))
        A('    v_lshrrev_b32 v%d, 1, v%d' % (vOFF, vOFF))
        A('    v_lshlrev_b32 v%d, %d, v%d' % (vOFF, wbl[1], vOFF))
        A('    v_lshl_add_u32 v%d, v%d, %d, v%d' % (vOFF, vT, wbl[0], vOFF))
    A('    s_and_b32 s21, s20, 0x%x' % wmask)
    A('    v_xor_b32 v%d, s21, v%d' % (vOFF, vOFF))
    A('    v_add_u32 v%d, v%d, v%d' % (vOFF, vOFF, vC16), 'per-lane load offset')
    A('    v_lshrrev_b32 v%d, 8, v%d' % (vT, vC16), 'g')
    A('    v_lshl_add_u32 v%d, v%d, 4, v%d' % (vSA, vT, vSA))
    A('    v_and_b32 v%d, 0xf0, v%d' % (vC16, vC16), 'c*16')
    A('    s_lshl_b32 s29, s2, 20', 'K/V range of this workgroup')
    A('    s_lshl_b32 s3, s2, 9', 'q/out range')
    A('    s_and_b32 s21, s20, 0x%x' % imask)
    for u in range(8):
        A('    s_xor_b32 s%d, s21, 0x%x' % (sIN+u, inner(u)), 'offset of load %d inside a window' % u if u == 0 else None)
    A('    s_and_b32 s22, s20, 0x%x' % omask)
    A('    s_mov_b32 s23, 0', 'window counter (spread over the remaining address bits)')
    A('    s_add_u32 s21, s29, s22')
    for u in range(P0):
        A('    s_add_u32 s36, s21, s%d' % (sIN+u))
        A('    v_add_u32 v%d, s36, v%d' % (vT+u, vOFF))
    A('    v_add_u32 v%d, s3, v%d' % (vS2, vC16), 'q offset')
    A('    v_mov_b32 v%d, 0' % vPG)
    if ctl == 1: A('    v_mov_b32 v%d, 0' % vZ)
    A('    s_mov_b32 s38, 0x%08x' % cbits, 'log2(e)/sqrt(128)')
    A('    s_mov_b32 s39, 0x%08x' % cbits)
    if P0 < 8: A('    s_mov_b32 s14, %d' % SPAN); A('    s_mov_b32 s15, 0x00020000')
    A('    s_mov_b32 s18, %d' % SPAN); A('    s_mov_b32 s19, 0x00020000')
    A('    s_mov_b32 s26, 512');       A('    s_mov_b32 s27, 0x00020000')
    A('    s_mov_b32 s35, 1', 'index of the window behind s[16:19]')
    A('    s_mov_b32 s49, 0xffff0000')
    A('    v_mov_b32 v%d, 0xff800000' % vM)
    A('    s_mov_b32 s32, 0')
    if sl: A('    s_mov_b32 s33, 0')
    A('    s_mov_b64 vcc, %d' % (-1 if v0 else 0), 'loops: vcc != 0 -> 6 KiB in flight, scc = 1 -> 4 KiB, else 5 KiB')
    if ctl:
        A('    ds_write_b32 v%d, v%d offset:%d' % (vPGA, vPG, CTL), 'progress[w] = 0')
        if ctl == 2: A('    ds_write_b32 v%d, v%d offset:%d' % (vPGA, vPG, CTL+16), 'mode[w] = 0')
        A('    s_cmp_eq_u32 s28, %d' % NW)
        A('    s_cbranch_scc1 L_ctl')
    A('    s_waitcnt lgkmcnt(0)')
    if prio: A('    s_setprio %d' % prio)
    if not qlast: A('    global_load_dwordx4 v[%d:%d], v%d, s[4:5]' % (vQ, vQ+3, vS2))
    for u in range(P0):
        A('    global_load_dwordx4 v[%d:%d], v%d, s[6:7] nt' % (SL(u), SL(u)+3, vT+u))
        if qlast == u+1: A('    global_load_dwordx4 v[%d:%d], v%d, s[4:5]' % (vQ, vQ+3, vS2))
    assert qlast <= 2
    A('    global_load_dwordx4 v[%d:%d], v%d, s[4:5] offset:256' % (vQB, vQB+3, vS2))
    if P0 < 8:
        A('    s_add_u32 s12, s6, s21', 's[12:15] = first window')
        A('    s_addc_u32 s13, s7, 0')
    A('    s_add_u32 s36, s6, s29', 's[36:37] = range being streamed')
    A('    s_addc_u32 s37, s7, 0')
    A('    s_add_u32 s30, s8, s29', 's[30:31] = V range')
    A('    s_addc_u32 s31, s9, 0')
    def nextouter():
        A('    s_or_b32 s23, s23, 0x%x' % ((~omask) & 0xffffffff))
        A('    s_add_u32 s23, s23, 1')
        A('    s_and_b32 s23, s23, 0x%x' % omask)
        A('    s_cselect_b64 s[36:37], s[36:37], s[30:31]', 'wrapped: K done, continue with V')
        A('    s_xor_b32 s21, s23, s22')
        A('    s_add_u32 s16, s36, s21', 's[16:19] = window being fetched (one ahead of the one computed)')
        A('    s_addc_u32 s17, s37, 0')
    def issue(idx):
        srd = 's[12:15]' if idx < RS else 's[16:19]'
        A('    buffer_load_dwordx4 v[%d:%d], v%d, %s, s%d offen nt' % (SL(idx), SL(idx)+3, vOFF, srd, sIN + idx % RS))
    nextouter()
    A('    s_add_u32 s24, s10, s3')
    A('    s_addc_u32 s25, s11, 0')
    if ctl: A('    s_barrier', 'control words initialised')
    for u in range(P0, PL):
        A('    s_waitcnt vmcnt(%d)' % (cs-1))
        issue(u)
    lab = [0]
    def capissue(idx):
        lab[0] += 1
        if ctl:
            A('    s_waitcnt vmcnt(%d)' % (cf-1))
            A('    s_cbranch_vccnz L_f%d' % lab[0])
            A('    s_waitcnt vmcnt(%d)' % (cs-1))
            if sl:
                A('    s_cbranch_scc0 L_f%d' % lab[0])
                A('    s_waitcnt vmcnt(%d)' % (cs-2))
            A('L_f%d:' % lab[0])
        else:
            A('    s_waitcnt vmcnt(%d)' % (cs-1))
        issue(idx)
    def advance():
        nextouter()
        A('    s_add_u32 s35, s35, 1')
        A('    s_cmp_ge_u32 s35, %d' % (4*nit))
        A('    s_cselect_b32 s18, 0, s18', 'past the end: empty descriptor, no traffic')
    A('L_khead:')
    A('    s_mov_b32 s34, %d' % nit)
    A('L_kloop:')
    if sl: A('    s_cmp_eq_u32 s33, 2')
    if ctl: A('    ds_read_b32 v%d, v%d offset:%d' % (vMD, vPGA if ctl == 2 else vZ, CTL+16))
    for u in range(RS):
        A('    s_waitcnt vmcnt(%d)' % (PL-1))
        j = u % 4
        for q in range(4):
            A('    v_dot2_f32_bf16 v%d, v%d, v%d, %s' % (vS+j, SL(u)+q, vQ+q, ('0' if q == 0 else 'v%d' % (vS+j))))
        capissue(u + PL)
        if j == 3:
            for r in (8, 4, 2, 1):
                for jj in range(4):
                    A('    v_add_f32_dpp v%d, v%d, v%d row_ror:%d row_mask:0xf bank_mask:0xf' % (vS+jj, vS+jj, vS+jj, r))
            A('    v_pk_mul_f32 v[%d:%d], v[%d:%d], s[38:39]' % (vS, vS+1, vS, vS+1))
            A('    v_pk_mul_f32 v[%d:%d], v[%d:%d], s[38:39]' % (vS+2, vS+3, vS+2, vS+3))
            A('    v_max3_f32 v%d, v%d, v%d, v%d' % (vM, vM, vS, vS+1))
            A('    ds_write_b128 v%d, v[%d:%d] offset:%d' % (vSA, vS, vS+3, (u//4)*64))
            A('    v_max3_f32 v%d, v%d, v%d, v%d' % (vM, vM, vS+2, vS+3))
    A('    v_add_u32 v%d, 128, v%d' % (vSA, vSA))
    if ctl:
        A('    v_add_u32 v%d, 1, v%d' % (vPG, vPG))
        A('    s_waitcnt lgkmcnt(2)')
        A('    v_cmp_eq_u32 vcc, 1, v%d' % vMD)
        if sl: A('    v_readfirstlane_b32 s33, v%d' % vMD)
        A('    ds_write_b32 v%d, v%d offset:%d' % (vPGA, vPG, CTL))
    advance()
    A('    s_sub_u32 s34, s34, 1'); A('    s_cmp_lg_u32 s34, 0'); A('    s_cbranch_scc1 L_kloop')
    A('    s_cmp_eq_u32 s32, 1')
    A('    s_cbranch_scc1 L_kdone')
    A('    s_mov_b32 s32, 1')
    A('    v_mov_b32 v%d, v%d' % (vMA, vM))
    for q in range(4): A('    v_mov_b32 v%d, v%d' % (vQ+q, vQB+q))
    A('    v_mov_b32 v%d, 0xff800000' % vM)
    A('    s_branch L_khead')
    A('; ---------------- phase 2: p * V ----------------')
    A('L_kdone:')
    A('    v_mov_b32 v%d, v%d' % (vMB, vM))
    A('    v_subrev_u32 v%d, %d, v%d' % (vSA, SC_BYTES//NW, vSA))
    A('    v_mov_b32 v%d, v%d' % (vM, vMA))
    vPA = vQ; vPM = vQ+1
    A('    v_lshrrev_b32 v%d, 4, v0' % vPM, 'partial index = wave*4 + g')
    A('    v_lshlrev_b32 v%d, 9, v%d' % (vPA, vPM))
    A('    v_lshl_add_u32 v%d, v%d, 1, v%d' % (vPA, vC16, vPA))
    A('    v_lshlrev_b32 v%d, 3, v%d' % (vPM, vPM))
    A('    ds_read_b128 v[%d:%d], v%d' % (vS, vS+3, vSA))
    A('    s_mov_b32 s32, 0')
    A('    s_mov_b32 s34, %d' % nit)
    A('L_vhead:')
    for i in range(8): A('    v_mov_b32 v%d, 0' % (vACC+i))
    A('    v_mov_b32 v%d, 0' % vL)
    def vbody(label, capped):
        A(label + ':')
        if sl and capped: A('    s_cmp_eq_u32 s33, 2')
        for u in range(RS):
            j = u % 4; t = u // 4
            cur = vS if t == 0 else vS2
            nxt = vS2 if t == 0 else vS
            if j == 0:
                A('    s_waitcnt lgkmcnt(0)')
                if ctl and capped and t == 1:
                    A('    v_cmp_eq_u32 vcc, 1, v%d' % vMD)
                    if sl:
                        A('    v_readfirstlane_b32 s33, v%d' % vMD)
                        A('    s_cmp_eq_u32 s33, 2')
                for jj in range(4):
                    A('    v_sub_f32 v%d, v%d, v%d' % (cur+jj, cur+jj, vM))
                A('    ds_read_b128 v[%d:%d], v%d offset:%d' % (nxt, nxt+3, vSA, (t+1)*64))
                if ctl and capped and t == 0:
                    A('    ds_read_b32 v%d, v%d offset:%d' % (vMD, vPGA if ctl == 2 else vZ, CTL+16))
                    A('    ds_write_b32 v%d, v%d offset:%d' % (vPGA, vPG, CTL))
                    A('    v_add_u32 v%d, 1, v%d' % (vPG, vPG))
                for jj in range(4):
                    A('    v_exp_f32 v%d, v%d' % (cur+jj, cur+jj))
            A('    s_waitcnt vmcnt(%d)' % (PL-1))
            pr = cur + j; pb = pr & ~1; sel = pr & 1
            for q in range(4):
                x = SL(u) + q
                A('    v_lshlrev_b32 v%d, 16, v%d' % (vT + 2*q, x))
                A('    v_and_b32 v%d, s49, v%d' % (vT + 2*q + 1, x))
            if not capped: issue(u + PL)
            for q in range(4):
                A('    v_pk_fma_f32 v[%d:%d], v[%d:%d], v[%d:%d], v[%d:%d] op_sel:[0,%d,0] op_sel_hi:[1,%d,1]' % (vACC+2*q, vACC+2*q+1, vT+2*q, vT+2*q+1, pb, pb+1, vACC+2*q, vACC+2*q+1, sel, sel))
            A('    v_add_f32 v%d, v%d, v%d' % (vL, vL, pr))
            if capped: capissue(u + PL)
        A('    v_add_u32 v%d, 128, v%d' % (vSA, vSA))
        advance()
        A('    s_sub_u32 s34, s34, 1'); A('    s_cmp_lg_u32 s34, 0'); A('    s_cbranch_scc1 ' + label)
    def wpart():
        A('    ds_write_b128 v%d, v[%d:%d] offset:%d' % (vPA, vACC, vACC+3, PART))
        A('    ds_write_b128 v%d, v[%d:%d] offset:%d' % (vPA, vACC+4, vACC+7, PART+16))
        A('    ds_write_b64 v%d, v[%d:%d] offset:%d' % (vPM, vM, vL, ML))
    vbody('L_vloop', True)
    A('    s_cmp_eq_u32 s32, 1')
    A('    s_cbranch_scc1 L_vtail')
    wpart()
    A('    s_mov_b32 s32, 1')
    A('    v_add_u32 v%d, %d, v%d' % (vPA, NP*512, vPA))
    A('    v_add_u32 v%d, %d, v%d' % (vPM, NP*8, vPM))
    A('    s_mov_b32 s34, %d' % (nit - tn))
    A('    v_mov_b32 v%d, v%d' % (vM, vMB))
    A('    s_branch L_vhead')
    A('L_vtail:', None)
    A('    s_mov_b32 s34, %d' % tn, 'last windows: full ring in flight')
    vbody('L_vloop2', False)
    wpart()
    A('; ---------------- merge the partials: thread t -> head t>>7, d = t&127 ----------------')
    vA = vF; vB = vF+1; vML = vF+2; vX = vF+4
    A('    v_and_b32 v%d, 127, v0' % vA)
    A('    v_lshrrev_b32 v%d, 7, v0' % vB)
    A('    v_lshlrev_b32 v%d, 2, v%d' % (vA, vA))
    A('    v_lshl_add_u32 v%d, v%d, 13, v%d' % (vA, vB, vA))
    A('    v_lshrrev_b32 v%d, 1, v%d' % (vT, vC16))
    A('    v_lshl_add_u32 v%d, v%d, 7, v%d' % (vB, vB, vT))
    A('    s_waitcnt lgkmcnt(0)')
    A('    s_barrier')
    A('    ds_read_b64 v[%d:%d], v%d offset:%d' % (vML, vML+1, vB, ML), 'lane c: (max, l) of partial c')
    for i in range(0, NP, 2):
        A('    ds_read2st64_b32 v[%d:%d], v%d offset0:%d offset1:%d' % (vX+i, vX+i+1, vA, PART//256 + 2*i, PART//256 + 2*i + 2))
    A('    s_waitcnt lgkmcnt(%d)' % (NP//2))
    A('    v_mov_b32 v%d, v%d' % (vT, vML))
    A('    s_nop 1')
    for r in (8, 4, 2, 1):
        A('    v_max_f32_dpp v%d, v%d, v%d row_ror:%d row_mask:0xf bank_mask:0xf' % (vT, vT, vT, r))
        if r != 1: A('    s_nop 1')
    A('    v_sub_f32 v%d, v%d, v%d' % (vML, vML, vT), 'partial max - row max')
    A('    v_exp_f32 v%d, v%d' % (vML, vML))
    A('    s_nop 0')
    A('    v_mul_f32 v%d, v%d, v%d' % (vT, vML, vML+1))
    A('    s_nop 1')
    for r in (8, 4, 2, 1):
        A('    v_add_f32_dpp v%d, v%d, v%d row_ror:%d row_mask:0xf bank_mask:0xf' % (vT, vT, vT, r))
        if r != 1: A('    s_nop 1')
    A('    v_rcp_f32 v%d, v%d' % (vT, vT))
    A('    v_lshlrev_b32 v%d, 1, v0' % vA)
    A('    s_waitcnt lgkmcnt(0)')
    for i in range(NP):
        op = 'v_mul_f32_dpp' if i < 4 else 'v_fmac_f32_dpp'
        A('    %s v%d, v%d, v%d row_newbcast:%d row_mask:0xf bank_mask:0xf' % (op, vT+2+(i % 4), vML, vX+i, i))
    A('    v_pk_add_f32 v[%d:%d], v[%d:%d], v[%d:%d]' % (vT+2, vT+3, vT+2, vT+3, vT+4, vT+5))
    A('    v_add_f32 v%d, v%d, v%d' % (vT+1, vT+2, vT+3))
    A('    v_mul_f32 v%d, v%d, v%d' % (vT+1, vT+1, vT))
    A('    v_cvt_pk_bf16_f32 v%d, v%d, v%d' % (vT+1, vT+1, vT+1))
    A('    buffer_store_short v%d, v%d, s[24:27], 0 offen' % (vT+1, vA))
    A('L_done:')
    A('    s_endpgm')
    if ctl == 2:
        A('; ---------------- wave 4: progress balancing (performance only) ----------------')
        A('; lanes 0-3 mirror waves 0-3: v4 progress, v12 mode (1: 6 KiB, 2: 4 KiB) valid while v4 < v5, v6 time at the checkpoint')
        A('; s40 checkpoint (window index), s41 ws offset of its row, s[52:53] start time of this wave')
        A('L_ctl:')
        A('    s_memrealtime s[52:53]')
        A('    v_and_b32 v8, 3, v0')
        A('    v_lshlrev_b32 v8, 2, v8')
        A('    v_mov_b32 v5, 0')
        A('    v_mov_b32 v6, 0')
        A('    v_mov_b32 v12, 1')
        A('    s_waitcnt lgkmcnt(0)')
        A('    s_barrier')
        A('    s_mov_b32 s40, %d' % (first or ck))
        A('    s_mov_b32 s41, 0')
        A('    s_and_b32 s46, s48, 7')
        A('    s_lshr_b32 s39, s48, 7')
        A('    s_lshl_b32 s39, s39, 3')
        A('    s_or_b32 s39, s39, s46')
        A('    s_lshl_b32 s39, s39, 8', 'slot of a publishing workgroup')
        A('    s_and_b32 s47, s48, 0x%x' % (0x78 if nb == 16 else 0xf8), '0: this workgroup publishes')
        A('    s_mov_b64 exec, 15')
        def poll(label, thr, stampit):
            A(label + ':')
            A('    s_sleep %d' % slp, 'poll own workgroup progress in LDS')
            A('    ds_read_b32 v4, v8 offset:%d' % CTL)
            A('    s_waitcnt lgkmcnt(0)')
            A('    v_cmp_lt_u32 vcc, v4, v5')
            A('    s_nop 1')
            A('    v_cndmask_b32 v7, 0, v12, vcc')
            A('    v_cmp_gt_u32 vcc, %s, v4' % thr, 'waves that have not reached it yet')
            A('    ds_write_b32 v8, v7 offset:%d' % (CTL+16), 'mode[w]')
            if stampit:
                A('    s_andn2_b32 s56, exec_lo, vcc_lo')
                A('    s_and_b32 s56, s56, s42', 'waves that just passed the checkpoint')
                A('    s_cbranch_scc0 ' + label)
                A('    s_memrealtime s[54:55]')
                A('    s_mov_b32 s42, vcc_lo')
                A('    s_waitcnt lgkmcnt(0)')
                A('    s_sub_u32 s46, s54, s52')
                A('    v_mov_b32 v9, s46')
                A('    v_cndmask_b32 v6, v6, v9, s[56:57]')
            A('    s_cbranch_vccnz ' + label)
        A('    s_mov_b32 s57, 0')
        A('L_cnext:')
        A('    s_mov_b32 s42, 15')
        poll('L_cp1', 's40', True)
        A('    s_cmp_lg_u32 s47, 0')
        A('    s_cbranch_scc1 L_cnb')
        A('    s_nop 1')
        A('    v_add_u32_dpp v10, v6, v6 quad_perm:[1,0,3,2] row_mask:0xf bank_mask:0xf')
        A('    s_add_u32 s46, s41, s39')
        A('    v_mov_b32 v9, s46')
        A('    v_add_u32_dpp v10, v10, v10 quad_perm:[2,3,0,1] row_mask:0xf bank_mask:0xf')
        A('    v_mov_b32 v11, s53')
        A('    v_lshrrev_b32 v10, 2, v10', 'mean over the 4 waves')
        A('    v_add_u32 v10, s52, v10')
        A('    s_mov_b64 exec, 1')
        A('    global_store_dwordx2 v9, v[10:11], s[50:51] sc0 sc1')
        A('    s_mov_b64 exec, 15')
        A('L_cnb:')
        if vt:
            A('    s_cmp_lg_u32 s40, %d' % vt)
            A('    s_cbranch_scc1 L_cnv')
            A('    v_mov_b32 v9, s29')
            A('    global_load_dword v13, v9, s[8:9] nt', 'touch the V range early: its translation is ready at the switch')
            A('L_cnv:')
        A('    s_add_u32 s38, s40, %d' % dly)
        poll('L_cp2', 's38', False)
        A('    s_add_u32 s60, s50, s41')
        A('    s_addc_u32 s61, s51, 0')
        for j in range(nb):
            A('    s_load_dwordx2 s[%d:%d], s[60:61], %d' % (64+2*j, 65+2*j, j*256))
        A('    s_mov_b32 s44, 0', 'sum of published times')
        A('    s_mov_b32 s46, 0', 'number of valid entries')
        A('    s_waitcnt lgkmcnt(0)')
        for j in range(nb):
            A('    s_sub_u32 s58, s%d, s52' % (64+2*j), 'valid iff written after this wave started' if j == 0 else None)
            A('    s_xor_b32 s59, s%d, s53' % (65+2*j))
            A('    s_cselect_b32 s58, -1, s58')
            A('    s_cmp_lt_u32 s58, 20000')
            A('    s_cselect_b32 s58, s58, 0')
            A('    s_addc_u32 s46, s46, 0')
            A('    s_add_u32 s44, s44, s58')
        A('    v_mul_u32_u24 v9, s46, v6')
        A('    v_subrev_u32 v9, s44, v9', 'count * lag of each wave')
        A('    v_mov_b32 v7, 0')
        for t_, n in zip(th, nf):
            A('    s_mul_i32 s59, s46, %d' % t_)
            A('    v_cmp_lt_i32 vcc, s59, v9')
            A('    s_nop 1')
            A('    v_cndmask_b32 v7, v7, %d, vcc' % n)
        if sl:
            A('    v_mov_b32 v12, 1')
            for t_, n in zip(sth, ns):
                A('    s_mul_i32 s59, s46, %d' % (-t_))
                A('    v_cmp_gt_i32 vcc, s59, v9')
                A('    s_nop 1')
                A('    v_cndmask_b32 v7, v7, %d, vcc' % n)
                A('    v_cndmask_b32 v12, v12, 2, vcc')
        A('    v_add_u32 v5, v4, v7', 'mode holds for the next 0..%d windows' % max(nf))
        A('    s_add_u32 s40, s40, %d' % ck)
        A('    s_add_u32 s41, s41, 4096')
        A('    s_cmp_le_u32 s40, %d' % last)
        A('    s_cbranch_scc1 L_cnext')
        A('    v_cmp_lt_u32 vcc, v4, v5')
        A('    s_nop 1')
        A('    v_cndmask_b32 v7, 0, v12, vcc')
        if sl: A('    v_and_b32 v7, 1, v7')
        A('    ds_write_b32 v8, v7 offset:%d' % (CTL+16))
        A('    s_endpgm')
        assert (last + dly) <= 32 + 2*nit - tn - 1
    elif ctl:
        A('; ---------------- wave 4: progress balancing (performance only) ----------------')
        A('; s40 checkpoint (sum of the 4 progress words), s41 ws offset of its row, s42 point where the deeper queue ends,')
        A('; s[52:53] start time of this wave, s45 time at which this workgroup passed the checkpoint')
        A('L_ctl:')
        A('    s_memrealtime s[52:53]')
        A('    s_waitcnt lgkmcnt(0)')
        A('    s_barrier')
        A('    s_mov_b32 s40, %d' % (ck*4))
        A('    s_mov_b32 s41, 0')
        A('    s_mov_b32 s42, -1')
        A('    s_and_b32 s46, s48, 7')
        A('    s_lshr_b32 s39, s48, 7')
        A('    s_lshl_b32 s39, s39, 3')
        A('    s_or_b32 s39, s39, s46')
        A('    s_lshl_b32 s39, s39, 8', 'slot of a publishing workgroup')
        A('    s_and_b32 s47, s48, 0x78', '0: this workgroup publishes')
        A('    s_mov_b64 exec, 1')
        def poll(label):
            A(label + ':')
            A('    s_sleep %d' % slp, 'poll own workgroup progress in LDS')
            A('    ds_read_b128 v[4:7], v%d offset:%d' % (vZ, CTL))
            A('    s_waitcnt lgkmcnt(0)')
            A('    v_add_u32 v4, v4, v5')
            A('    v_add3_u32 v4, v4, v6, v7')
            A('    s_nop 0')
            A('    v_readfirstlane_b32 s43, v4')
            A('    s_cmp_ge_u32 s43, s42')
            A('    s_cbranch_scc0 %s_nr' % label)
            A('    ds_write_b32 v%d, v%d offset:%d' % (vZ, vZ, CTL+16), 'mode = 0')
            A('    s_mov_b32 s42, -1')
            A(label + '_nr:')
            A('    s_cmp_ge_u32 s43, s38')
            A('    s_cbranch_scc0 ' + label)
        A('L_cnext:')
        A('    s_mov_b32 s44, 0')
        A('    s_sub_u32 s38, s40, 3')
        poll('L_cp1')
        A('    s_memrealtime s[54:55]')
        A('    s_waitcnt lgkmcnt(0)')
        A('    s_sub_u32 s46, s54, s52')
        A('    s_add_u32 s44, s44, s46')
        A('    s_add_u32 s38, s38, 1')
        A('    s_cmp_le_u32 s38, s40')
        A('    s_cbranch_scc1 L_cp1')
        A('    s_lshr_b32 s44, s44, 2', 'mean over the 4 waves')
        A('    s_add_u32 s45, s44, s52')
        A('    s_cmp_lg_u32 s47, 0')
        A('    s_cbranch_scc1 L_cnb')
        A('    s_add_u32 s46, s41, s39')
        A('    v_mov_b32 v9, s46')
        A('    v_mov_b32 v10, s45')
        A('    v_mov_b32 v11, s53')
        A('    global_store_dwordx2 v9, v[10:11], s[50:51] sc0 sc1')
        A('L_cnb:')
        A('    s_add_u32 s38, s40, %d' % (dly*4))
        poll('L_cp2')
        A('    s_add_u32 s60, s50, s41')
        A('    s_addc_u32 s61, s51, 0')
        for j in range(16):
            A('    s_load_dwordx2 s[%d:%d], s[60:61], %d' % (64+2*j, 65+2*j, j*256))
        A('    s_mov_b32 s44, 0', 'sum of lags')
        A('    s_mov_b32 s46, 0', 'number of valid entries')
        A('    s_waitcnt lgkmcnt(0)')
        for j in range(16):
            A('    s_sub_u32 s58, s%d, s52' % (64+2*j), 'valid iff written after this wave started' if j == 0 else None)
            A('    s_xor_b32 s59, s%d, s53' % (65+2*j))
            A('    s_cselect_b32 s58, -1, s58')
            A('    s_sub_u32 s59, s45, s%d' % (64+2*j))
            A('    s_cmp_lt_u32 s58, 20000')
            A('    s_cselect_b32 s59, s59, 0')
            A('    s_addc_u32 s46, s46, 0')
            A('    s_add_u32 s44, s44, s59')
        A('    s_mov_b32 s58, 0')
        for t_, n in zip(th, nf):
            A('    s_mul_i32 s59, s46, %d' % t_)
            A('    s_cmp_gt_i32 s44, s59')
            A('    s_cselect_b32 s58, %d, s58' % (n*4))
        A('    s_cmp_eq_u32 s58, 0')
        A('    s_cbranch_scc1 L_cnof')
        A('    s_add_u32 s42, s43, s58')
        A('    v_mov_b32 v11, 1')
        A('    ds_write_b32 v%d, v11 offset:%d' % (vZ, CTL+16), 'mode = 1 for the next windows')
        A('L_cnof:')
        A('    s_add_u32 s40, s40, %d' % (ck*4))
        A('    s_add_u32 s41, s41, 4096')
        A('    s_cmp_le_u32 s40, %d' % (last*4))
        A('    s_cbranch_scc1 L_cnext')
        A('    s_endpgm')
        assert (last + dly) <= 32 + 2*nit - tn - 1
    A('.section .rodata,"a"'); A('.p2align 6'); A('.amdhsa_kernel %s_kernel' % NAME)
    A('  .amdhsa_next_free_vgpr %d' % nv)
    A('  .amdhsa_next_free_sgpr 96')
    A('  .amdhsa_accum_offset %d' % ((nv+3)//4*4))
    A('  .amdhsa_group_segment_fixed_size 0'); A('  .amdhsa_kernarg_size 48'); A('  .amdhsa_user_sgpr_count 2')
    A('  .amdhsa_user_sgpr_kernarg_segment_ptr 1'); A('  .amdhsa_system_sgpr_workgroup_id_x 1')
    A('  .amdhsa_float_denorm_mode_32 3')
    A('.end_amdhsa_kernel')
    return '\n'.join(o) + '\n'

if __name__ == '__main__':
    import build
    args = []
    for spec in sys.argv[1:]:
        kv = dict(x.split('=') for x in spec.split(','))
        fn = 'g5_' + spec.replace('=', '').replace(',', '_').replace('.', '-') + '.s'
        kw = {}
        for k, v in kv.items():
            kw[k] = tuple(int(x) for x in v.split('.')) if k in ('th', 'nf', 'ps', 'wb', 'ib', 'sth', 'ns') else int(v)
        open(fn, 'w').write(gen(**kw))
        args.append(build.build(fn))
    open('args.txt', 'w').write(' '.join(args))
    open('names.txt', 'w').write(' '.join(a.split(':')[0][3:-3] for a in args))
    print(' '.join('"dev/%s",' % a.split(':')[0] for a in args))
```

```python
import sys, math, struct
NAME = "standalone__mha_softmax__sampling"

def gen(cs=5, cf=6, tn=2, ck=4, last=56, dly=2, th=(25, 55, 90), nf=(1, 2, 4), ctl=2, lds=98304, P0=8, rm=3, ps=(2, 5), v0=1, qlast=0, vt=0, slp=2, prio=0, stamp=0, ks=0, fin=1, first=0, nb=16, wb=(11, 12), ib=(16, 10, 13), b17=1, sl=1, sth=(25, 60), ns=(1, 2)):
    NW, RS, PL = 4, 8, 8
    if fin: tn = 1
    nit = 16
    NP = 16
    SC_BYTES = 16384
    PART = SC_BYTES
    ML = PART + 2*NP*512
    CTL = ML + 2*NP*8
    wbl = list(wb); ibl = list(ib)
    wmask = sum(1 << b for b in wbl); imask = sum(1 << b for b in ibl)
    omask = 0xffc00 & ~wmask & ~imask
    SPAN = (wmask | imask) + 1024
    def inner(u): return sum(((u >> i) & 1) << ibl[i] for i in range(3))
    nthreads = NW*64 + (64 if ctl else 0)
    o = []
    def A(s, c=None):
        o.append(s if c is None else '%-72s ; %s' % (s, c))
    for line in open('cdna_kernels/%s.s.ref' % NAME).read().split('\n'):
        if line.startswith('; @launch'): break
        A(line)
    A("; @launch grid=(256,1,1) block=(%d,1,1) lds=%d" % (nthreads, lds))
    for l in """;
; Decode attention (Sq = 1): out[h] = softmax(q[h] . K[h]^T / sqrt(128)) V[h], 512 heads, 2048 keys, D = 128.
; HBM-bound: K and V (256 MiB each) are streamed exactly once with non-temporal 16 B/lane loads.
;
; Work split: one workgroup per CU (the LDS size keeps it that way); it owns two consecutive heads = one contiguous
;   1 MiB range of K and of V.  Waves 0-3 stream; one load = 4 key rows (lane group g = lane>>4 holds one row,
;   lane c = lane&15 holds d = 8c..8c+7).
; Phase 1: all of K.  score = dot(q, k) (v_dot2 + 16-lane DPP sum), scaled to log2 units and kept in LDS, with the
;   exact running max per (wave, lane group, head).
; Phase 2: all of V.  p = exp2(score - max), acc += p * v in f32, l += p.
; End: the 16 partial (max, l, acc[128]) of each head are merged with the true row max and normalised.
;   (Reading K and V in separate phases avoids the lower DRAM efficiency seen when two buffers are interleaved.)
; Memory-level parallelism: each wave keeps 5 KiB in flight (s_waitcnt vmcnt before every issue): just enough to
;   saturate HBM; more than that makes the fabric arbitration unfair between dies and lengthens the tail.
;   The row visiting order inside a workgroup's range is a bit permutation chosen for DRAM page locality.
; Wave 4 is a helper that balances progress between workgroups inside this launch, so that all finish together:
;   16 workgroups publish when they pass each 1/16 of their work (in d_ws; entries not written by this launch are
;   ignored), every workgroup compares its waves with them and lets a lagging wave keep 6 KiB (a leading wave
;   4 KiB) in flight for a few windows.  It never affects results, and nothing ever waits on another workgroup.""".split('\n'):
        A(l)
    A('.amdgcn_target "amdgcn-amd-amdhsa--gfx950"')
    A('.text'); A('.globl %s_kernel' % NAME); A('.p2align 12', 'whole streaming path in one 4 KiB page'); A('.p2align 8'); A('.type %s_kernel,@function' % NAME)
    A('%s_kernel:' % NAME)
    vOFF = 1; vC16 = 2; vSA = 3
    vQ = 4; vQB = 8; vS = 12; vS2 = 16; vACC = 20
    vM = 28; vL = 29; vMA = 30; vMB = 31
    vT = 32
    vPG = 40; vPGA = 41; vMD = 42; vZ = 43
    vR = 44
    vF = vR + 4*RS
    nv = vF + 20
    def SL(u): return vR + 4*(u % RS)
    c = (128 ** -0.5) * math.log2(math.e)
    cbits = struct.unpack('<I', struct.pack('<f', c))[0]
    sIN = 40
    A('    s_load_dwordx8 s[4:11], s[0:1], 0', 'q, k, v, out')
    if ctl: A('    s_load_dwordx2 s[50:51], s[0:1], 40', 'ws')
    A('    s_cmp_ge_u32 s2, 256')
    A('    s_cbranch_scc1 L_done', 'extra workgroups exit')
    A('    s_mov_b32 s48, s2')
    if stamp: A('    s_memrealtime s[52:53]'); A('    s_memrealtime s[60:61]')
    if rm == 1:
        A('    s_and_b32 s20, s2, 7'); A('    s_lshl_b32 s20, s20, 5'); A('    s_lshr_b32 s2, s2, 3'); A('    s_or_b32 s2, s2, s20')
    elif rm == 2:
        A('    s_and_b32 s20, s2, 7'); A('    s_lshl_b32 s20, s20, 1'); A('    s_bfe_u32 s21, s2, 0x10003'); A('    s_or_b32 s20, s20, s21'); A('    s_and_b32 s2, s2, 0xf0'); A('    s_or_b32 s2, s2, s20')
    elif rm == 3:
        A('    s_and_b32 s20, s2, 7', 'range index = id with bits {0..2} and {3,4} swapped (speed only)'); A('    s_lshl_b32 s20, s20, 2'); A('    s_bfe_u32 s21, s2, 0x20003'); A('    s_or_b32 s20, s20, s21'); A('    s_and_b32 s2, s2, 0xe0'); A('    s_or_b32 s2, s2, s20')
    if rm == 4:
        A('    s_and_b32 s20, s2, 7'); A('    s_lshl_b32 s20, s20, 3'); A('    s_bfe_u32 s21, s2, 0x30003'); A('    s_or_b32 s20, s20, s21'); A('    s_and_b32 s2, s2, 0xc0'); A('    s_or_b32 s2, s2, s20')
    A('    v_and_b32 v%d, 63, v0' % vC16)
    A('    v_lshrrev_b32 v%d, 6, v0' % vOFF, 'wave id')
    A('    v_lshlrev_b32 v%d, 4, v%d' % (vC16, vC16), 'lane*16')
    A('    v_readfirstlane_b32 s28, v%d' % vOFF)
    A('    v_lshlrev_b32 v%d, 12, v%d' % (vSA, vOFF), 'score area of this wave (4 KiB)')
    A('    v_lshlrev_b32 v%d, 2, v%d' % (vPGA, vOFF), 'progress word address')
    A('    s_lshr_b32 s20, s2, %d' % ps[0])
    for x in ps[1:]:
        A('    s_lshr_b32 s21, s2, %d' % x)
        A('    s_xor_b32 s20, s20, s21')
    A('    s_and_b32 s20, s20, 7')
    if b17:
        A('    s_and_b32 s21, s2, 32')
        A('    s_or_b32 s20, s20, s21')
    A('    s_lshl_b32 s20, s20, 12', 'per-workgroup xor on address bits 12..14 and 17')
    if wbl[1] == wbl[0] + 1:
        A('    v_lshlrev_b32 v%d, %d, v%d' % (vOFF, wbl[0], vOFF), 'wave id -> address bits %d,%d' % tuple(wbl))
    else:
        A('    v_and_b32 v%d, 1, v%d' % (vT, vOFF))
        A('    v_lshrrev_b32 v%d, 1, v%d' % (vOFF, vOFF))
        A('    v_lshlrev_b32 v%d, %d, v%d' % (vOFF, wbl[1], vOFF))
        A('    v_lshl_add_u32 v%d, v%d, %d, v%d' % (vOFF, vT, wbl[0], vOFF))
    A('    s_and_b32 s21, s20, 0x%x' % wmask)
    A('    v_xor_b32 v%d, s21, v%d' % (vOFF, vOFF))
    A('    v_add_u32 v%d, v%d, v%d' % (vOFF, vOFF, vC16), 'per-lane load offset')
    A('    v_lshrrev_b32 v%d, 8, v%d' % (vT, vC16), 'g')
    A('    v_lshl_add_u32 v%d, v%d, 4, v%d' % (vSA, vT, vSA))
    A('    v_and_b32 v%d, 0xf0, v%d' % (vC16, vC16), 'c*16')
    A('    s_lshl_b32 s29, s2, 20', 'K/V range of this workgroup')
    A('    s_lshl_b32 s3, s2, 9', 'q/out range')
    A('    s_and_b32 s21, s20, 0x%x' % imask)
    for u in range(8):
        A('    s_xor_b32 s%d, s21, 0x%x' % (sIN+u, inner(u)), 'offset of load %d inside a window' % u if u == 0 else None)
    A('    s_and_b32 s22, s20, 0x%x' % omask)
    A('    s_mov_b32 s23, 0', 'window counter (spread over the remaining address bits)')
    A('    s_add_u32 s21, s29, s22')
    for u in range(P0):
        A('    s_add_u32 s36, s21, s%d' % (sIN+u))
        A('    v_add_u32 v%d, s36, v%d' % (vT+u, vOFF))
    A('    v_add_u32 v%d, s3, v%d' % (vS2, vC16), 'q offset')
    A('    v_mov_b32 v%d, 0' % vPG)
    if ctl == 1: A('    v_mov_b32 v%d, 0' % vZ)
    A('    s_mov_b32 s38, 0x%08x' % cbits, 'log2(e)/sqrt(128)')
    A('    s_mov_b32 s39, 0x%08x' % cbits)
    if P0 < 8: A('    s_mov_b32 s14, %d' % SPAN); A('    s_mov_b32 s15, 0x00020000')
    A('    s_mov_b32 s18, %d' % SPAN); A('    s_mov_b32 s19, 0x00020000')
    A('    s_mov_b32 s26, 512');       A('    s_mov_b32 s27, 0x00020000')
    if not fin or stamp: A('    s_mov_b32 s35, 1', 'index of the window behind s[16:19]')
    A('    s_mov_b32 s49, 0xffff0000')
    A('    v_mov_b32 v%d, 0xff800000' % vM)
    A('    s_mov_b32 s32, 0')
    if sl: A('    s_mov_b32 s33, 0')
    A('    s_mov_b64 vcc, %d' % (-1 if v0 else 0), 'loops: vcc != 0 -> 6 KiB in flight, scc = 1 -> 4 KiB, else 5 KiB')
    if ctl:
        A('    ds_write_b32 v%d, v%d offset:%d' % (vPGA, vPG, CTL), 'progress[w] = 0')
        if ctl == 2: A('    ds_write_b32 v%d, v%d offset:%d' % (vPGA, vPG, CTL+16), 'mode[w] = 0')
        A('    s_cmp_eq_u32 s28, %d' % NW)
        A('    s_cbranch_scc1 L_ctl')
    A('    s_waitcnt lgkmcnt(0)')
    if prio: A('    s_setprio %d' % prio)
    if not qlast: A('    global_load_dwordx4 v[%d:%d], v%d, s[4:5]' % (vQ, vQ+3, vS2))
    for u in range(P0):
        A('    global_load_dwordx4 v[%d:%d], v%d, s[6:7] nt' % (SL(u), SL(u)+3, vT+u))
        if qlast == u+1: A('    global_load_dwordx4 v[%d:%d], v%d, s[4:5]' % (vQ, vQ+3, vS2))
    assert qlast <= 2
    A('    global_load_dwordx4 v[%d:%d], v%d, s[4:5] offset:256' % (vQB, vQB+3, vS2))
    if P0 < 8:
        A('    s_add_u32 s12, s6, s21', 's[12:15] = first window')
        A('    s_addc_u32 s13, s7, 0')
    A('    s_add_u32 s36, s6, s29', 's[36:37] = range being streamed')
    A('    s_addc_u32 s37, s7, 0')
    A('    s_add_u32 s30, s8, s29', 's[30:31] = V range')
    A('    s_addc_u32 s31, s9, 0')
    def nextouter():
        A('    s_or_b32 s23, s23, 0x%x' % ((~omask) & 0xffffffff))
        A('    s_add_u32 s23, s23, 1')
        A('    s_and_b32 s23, s23, 0x%x' % omask)
        A('    s_cselect_b64 s[36:37], s[36:37], s[30:31]', 'wrapped: K done, continue with V')
        A('    s_xor_b32 s21, s23, s22')
        A('    s_add_u32 s16, s36, s21', 's[16:19] = window being fetched (one ahead of the one computed)')
        A('    s_addc_u32 s17, s37, 0')
    def issue(idx):
        srd = 's[12:15]' if idx < RS else 's[16:19]'
        A('    buffer_load_dwordx4 v[%d:%d], v%d, %s, s%d offen nt' % (SL(idx), SL(idx)+3, vOFF, srd, sIN + idx % RS))
    nextouter()
    A('    s_add_u32 s24, s10, s3')
    A('    s_addc_u32 s25, s11, 0')
    if ctl: A('    s_barrier', 'control words initialised')
    for u in range(P0, PL):
        A('    s_waitcnt vmcnt(%d)' % (cs-1))
        issue(u)
    lab = [0]
    def capissue(idx):
        lab[0] += 1
        if ctl:
            A('    s_waitcnt vmcnt(%d)' % (cf-1))
            A('    s_cbranch_vccnz L_f%d' % lab[0])
            A('    s_waitcnt vmcnt(%d)' % (cs-1))
            if sl:
                A('    s_cbranch_scc0 L_f%d' % lab[0])
                A('    s_waitcnt vmcnt(%d)' % (cs-2))
            A('L_f%d:' % lab[0])
        else:
            A('    s_waitcnt vmcnt(%d)' % (cs-1))
        issue(idx)
    def advance():
        if stamp:
            A('    s_waitcnt lgkmcnt(0)')
            A('    s_sub_u32 s58, s35, 1')
            A('    s_mov_b32 m0, s58')
            A('    v_writelane_b32 v%d, s60, m0' % vZ)
            A('    s_memrealtime s[60:61]')
        nextouter()
        if not fin or stamp: A('    s_add_u32 s35, s35, 1')
        if not fin:
            A('    s_cmp_ge_u32 s35, %d' % (4*nit))
            A('    s_cselect_b32 s18, 0, s18', 'past the end: empty descriptor, no traffic')
    A('L_khead:')
    A('    s_mov_b32 s34, %d' % nit)
    A('L_kloop:')
    if sl: A('    s_cmp_eq_u32 s33, 2')
    if ctl: A('    ds_read_b32 v%d, v%d offset:%d' % (vMD, vPGA if ctl == 2 else vZ, CTL+16))
    for u in range(RS):
        A('    s_waitcnt vmcnt(%d)' % (PL-1))
        j = u % 4
        for q in range(4):
            A('    v_dot2_f32_bf16 v%d, v%d, v%d, %s' % (vS+j, SL(u)+q, vQ+q, ('0' if q == 0 else 'v%d' % (vS+j))))
        def dpp(jj, r): A('    v_add_f32_dpp v%d, v%d, v%d row_ror:%d row_mask:0xf bank_mask:0xf' % (vS+jj, vS+jj, vS+jj, r))
        if ks == 2 and j > 0:
            dpp(j-1, 2); A('    s_nop 1'); dpp(j-1, 1)
        capissue(u + PL)
        if ks == 1:
            A('    s_nop 0')
            for r in (8, 4, 2, 1):
                dpp(j, r)
                if r != 1: A('    s_nop 1')
        elif ks == 2:
            if j == 0: A('    s_nop 0')
            dpp(j, 8); A('    s_nop 1'); dpp(j, 4)
            if j == 3:
                A('    s_nop 1'); dpp(j, 2); A('    s_nop 1'); dpp(j, 1)
        elif ks == 3 and j in (1, 3):
            A('    s_nop 0')
            for r in (8, 4, 2, 1):
                dpp(j-1, r); dpp(j, r)
                if r != 1: A('    s_nop 0')
        if j == 3:
            if ks == 0:
                for r in (8, 4, 2, 1):
                    for jj in range(4): dpp(jj, r)
            A('    v_pk_mul_f32 v[%d:%d], v[%d:%d], s[38:39]' % (vS, vS+1, vS, vS+1))
            A('    v_pk_mul_f32 v[%d:%d], v[%d:%d], s[38:39]' % (vS+2, vS+3, vS+2, vS+3))
            A('    v_max3_f32 v%d, v%d, v%d, v%d' % (vM, vM, vS, vS+1))
            A('    ds_write_b128 v%d, v[%d:%d] offset:%d' % (vSA, vS, vS+3, (u//4)*64))
            A('    v_max3_f32 v%d, v%d, v%d, v%d' % (vM, vM, vS+2, vS+3))
    A('    v_add_u32 v%d, 128, v%d' % (vSA, vSA))
    if ctl:
        A('    v_add_u32 v%d, 1, v%d' % (vPG, vPG))
        A('    s_waitcnt lgkmcnt(%d)' % (0 if stamp else 2))
        A('    v_cmp_eq_u32 vcc, 1, v%d' % vMD)
        if sl: A('    v_readfirstlane_b32 s33, v%d' % vMD)
        A('    ds_write_b32 v%d, v%d offset:%d' % (vPGA, vPG, CTL))
    advance()
    A('    s_sub_u32 s34, s34, 1'); A('    s_cmp_lg_u32 s34, 0'); A('    s_cbranch_scc1 L_kloop')
    A('    s_cmp_eq_u32 s32, 1')
    A('    s_cbranch_scc1 L_kdone')
    A('    s_mov_b32 s32, 1')
    A('    v_mov_b32 v%d, v%d' % (vMA, vM))
    for q in range(4): A('    v_mov_b32 v%d, v%d' % (vQ+q, vQB+q))
    A('    v_mov_b32 v%d, 0xff800000' % vM)
    A('    s_branch L_khead')
    A('; ---------------- phase 2: p * V ----------------')
    A('L_kdone:')
    A('    v_mov_b32 v%d, v%d' % (vMB, vM))
    A('    v_subrev_u32 v%d, %d, v%d' % (vSA, SC_BYTES//NW, vSA))
    A('    v_mov_b32 v%d, v%d' % (vM, vMA))
    vPA = vQ; vPM = vQ+1
    A('    v_lshrrev_b32 v%d, 4, v0' % vPM, 'partial index = wave*4 + g')
    A('    v_lshlrev_b32 v%d, 9, v%d' % (vPA, vPM))
    A('    v_lshl_add_u32 v%d, v%d, 1, v%d' % (vPA, vC16, vPA))
    A('    v_lshlrev_b32 v%d, 3, v%d' % (vPM, vPM))
    A('    ds_read_b128 v[%d:%d], v%d' % (vS, vS+3, vSA))
    A('    s_mov_b32 s32, 0')
    A('    s_mov_b32 s34, %d' % nit)
    A('L_vhead:')
    for i in range(8): A('    v_mov_b32 v%d, 0' % (vACC+i))
    A('    v_mov_b32 v%d, 0' % vL)
    def vbody(label, capped):
        A(label + ':')
        if sl and capped: A('    s_cmp_eq_u32 s33, 2')
        for u in range(RS):
            j = u % 4; t = u // 4
            cur = vS if t == 0 else vS2
            nxt = vS2 if t == 0 else vS
            if j == 0:
                A('    s_waitcnt lgkmcnt(0)')
                if ctl and capped and t == 1:
                    A('    v_cmp_eq_u32 vcc, 1, v%d' % vMD)
                    if sl:
                        A('    v_readfirstlane_b32 s33, v%d' % vMD)
                        A('    s_cmp_eq_u32 s33, 2')
                for jj in range(4):
                    A('    v_sub_f32 v%d, v%d, v%d' % (cur+jj, cur+jj, vM))
                if not (fin and not capped and t == 1):
                    A('    ds_read_b128 v[%d:%d], v%d offset:%d' % (nxt, nxt+3, vSA, (t+1)*64))
                if ctl and capped and t == 0:
                    A('    ds_read_b32 v%d, v%d offset:%d' % (vMD, vPGA if ctl == 2 else vZ, CTL+16))
                    A('    ds_write_b32 v%d, v%d offset:%d' % (vPGA, vPG, CTL))
                    A('    v_add_u32 v%d, 1, v%d' % (vPG, vPG))
                for jj in range(4):
                    A('    v_exp_f32 v%d, v%d' % (cur+jj, cur+jj))
            A('    s_waitcnt vmcnt(%d)' % ((PL-1-u) if (fin and not capped) else (PL-1)))
            pr = cur + j; pb = pr & ~1; sel = pr & 1
            for q in range(4):
                x = SL(u) + q
                A('    v_lshlrev_b32 v%d, 16, v%d' % (vT + 2*q, x))
                A('    v_and_b32 v%d, s49, v%d' % (vT + 2*q + 1, x))
            if not capped and not fin: issue(u + PL)
            for q in range(4):
                A('    v_pk_fma_f32 v[%d:%d], v[%d:%d], v[%d:%d], v[%d:%d] op_sel:[0,%d,0] op_sel_hi:[1,%d,1]' % (vACC+2*q, vACC+2*q+1, vT+2*q, vT+2*q+1, pb, pb+1, vACC+2*q, vACC+2*q+1, sel, sel))
            A('    v_add_f32 v%d, v%d, v%d' % (vL, vL, pr))
            if capped: capissue(u + PL)
        if fin and not capped:
            if stamp: advance()
            return
        A('    v_add_u32 v%d, 128, v%d' % (vSA, vSA))
        advance()
        A('    s_sub_u32 s34, s34, 1'); A('    s_cmp_lg_u32 s34, 0'); A('    s_cbranch_scc1 ' + label)
    def wpart():
        A('    ds_write_b128 v%d, v[%d:%d] offset:%d' % (vPA, vACC, vACC+3, PART))
        A('    ds_write_b128 v%d, v[%d:%d] offset:%d' % (vPA, vACC+4, vACC+7, PART+16))
        A('    ds_write_b64 v%d, v[%d:%d] offset:%d' % (vPM, vM, vL, ML))
    vbody('L_vloop', True)
    A('    s_cmp_eq_u32 s32, 1')
    A('    s_cbranch_scc1 L_vtail')
    wpart()
    A('    s_mov_b32 s32, 1')
    A('    v_add_u32 v%d, %d, v%d' % (vPA, NP*512, vPA))
    A('    v_add_u32 v%d, %d, v%d' % (vPM, NP*8, vPM))
    A('    s_mov_b32 s34, %d' % (nit - tn))
    A('    v_mov_b32 v%d, v%d' % (vM, vMB))
    A('    s_branch L_vhead')
    A('; last window: nothing left to fetch')
    A('L_vtail:', None)
    vA = vF; vB = vF+1; vML = vF+2; vX = vF+4
    def maddr():
        A('    v_and_b32 v%d, 127, v0' % vA)
        A('    v_lshrrev_b32 v%d, 7, v0' % vB)
        A('    v_lshlrev_b32 v%d, 2, v%d' % (vA, vA))
        A('    v_lshl_add_u32 v%d, v%d, 13, v%d' % (vA, vB, vA))
        A('    v_lshrrev_b32 v%d, 1, v%d' % (vML, vC16))
        A('    v_lshl_add_u32 v%d, v%d, 7, v%d' % (vB, vB, vML))
        A('    v_lshlrev_b32 v%d, 1, v0' % vPG)
    if fin: maddr()
    else: A('    s_mov_b32 s34, %d' % tn, 'last windows: full ring in flight')
    vbody('L_vloop2', False)
    wpart()
    A('; ---------------- merge the partials: thread t -> head t>>7, d = t&127 ----------------')
    if not fin: maddr()
    A('    s_waitcnt lgkmcnt(0)')
    A('    s_barrier')
    A('    ds_read_b64 v[%d:%d], v%d offset:%d' % (vML, vML+1, vB, ML), 'lane c: (max, l) of partial c')
    for i in range(0, NP, 2):
        A('    ds_read2st64_b32 v[%d:%d], v%d offset0:%d offset1:%d' % (vX+i, vX+i+1, vA, PART//256 + 2*i, PART//256 + 2*i + 2))
    A('    s_waitcnt lgkmcnt(%d)' % (0 if stamp else NP//2))
    A('    v_mov_b32 v%d, v%d' % (vT, vML))
    A('    s_nop 1')
    for r in (8, 4, 2, 1):
        A('    v_max_f32_dpp v%d, v%d, v%d row_ror:%d row_mask:0xf bank_mask:0xf' % (vT, vT, vT, r))
        if r != 1: A('    s_nop 1')
    A('    v_sub_f32 v%d, v%d, v%d' % (vML, vML, vT), 'partial max - row max')
    A('    v_exp_f32 v%d, v%d' % (vML, vML))
    A('    s_nop 0')
    A('    v_mul_f32 v%d, v%d, v%d' % (vT, vML, vML+1))
    def fm(i):
        op = 'v_mul_f32_dpp' if i < 4 else 'v_fmac_f32_dpp'
        A('    %s v%d, v%d, v%d row_newbcast:%d row_mask:0xf bank_mask:0xf' % (op, vT+2+(i % 4), vML, vX+i, i))
    if fin:
        A('    s_waitcnt lgkmcnt(0)')
        k = 0
        for r in (8, 4, 2, 1):
            fm(k); fm(k+1); fm(k+2); k += 3
            A('    v_add_f32_dpp v%d, v%d, v%d row_ror:%d row_mask:0xf bank_mask:0xf' % (vT, vT, vT, r))
        A('    v_rcp_f32 v%d, v%d' % (vT, vT))
        while k < NP: fm(k); k += 1
    else:
        A('    s_nop 1')
        for r in (8, 4, 2, 1):
            A('    v_add_f32_dpp v%d, v%d, v%d row_ror:%d row_mask:0xf bank_mask:0xf' % (vT, vT, vT, r))
            if r != 1: A('    s_nop 1')
        A('    v_rcp_f32 v%d, v%d' % (vT, vT))
        A('    s_waitcnt lgkmcnt(0)')
        for i in range(NP): fm(i)
    A('    v_pk_add_f32 v[%d:%d], v[%d:%d], v[%d:%d]' % (vT+2, vT+3, vT+2, vT+3, vT+4, vT+5))
    A('    v_add_f32 v%d, v%d, v%d' % (vT+1, vT+2, vT+3))
    A('    v_mul_f32 v%d, v%d, v%d' % (vT+1, vT+1, vT))
    A('    v_cvt_pk_bf16_f32 v%d, v%d, v%d' % (vT+1, vT+1, vT+1))
    A('    buffer_store_short v%d, v%d, s[24:27], 0 offen' % (vT+1, vPG))
    if stamp:
        A('    s_memrealtime s[58:59]')
        A('    s_getreg_b32 s47, hwreg(HW_REG_XCC_ID)')
        A('    s_waitcnt lgkmcnt(0)')
        A('    s_lshl_b32 s46, s48, 10'); A('    s_add_u32 s46, s46, 0x40000')
        A('    v_lshl_add_u32 v2, v0, 2, s46')
        A('    global_store_dword v2, v%d, s[50:51]' % vZ)
        A('    s_lshl_b32 s46, s48, 4'); A('    s_lshl_b32 s45, s28, 2'); A('    s_add_u32 s46, s46, s45'); A('    s_add_u32 s46, s46, 0x3c000')
        A('    v_mov_b32 v2, s46'); A('    v_mov_b32 v3, s60')
        A('    global_store_dword v2, v3, s[50:51]')
        A('    s_cmp_lg_u32 s28, 0'); A('    s_cbranch_scc1 L_done')
        A('    s_lshl_b32 s46, s48, 5')
        A('    v_mov_b32 v2, s46'); A('    v_mov_b32 v4, s52'); A('    v_mov_b32 v5, s52'); A('    v_mov_b32 v6, s58'); A('    v_mov_b32 v7, s58')
        A('    global_store_dwordx4 v2, v[4:7], s[50:51]')
        A('    v_mov_b32 v8, s47'); A('    v_mov_b32 v9, s47')
        A('    global_store_dwordx2 v2, v[8:9], s[50:51] offset:16')
    A('L_done:')
    A('    s_endpgm')
    if ctl == 2:
        A('; ---------------- wave 4: progress balancing (performance only) ----------------')
        A('; lanes 0-3 mirror waves 0-3: v4 progress, v12 mode (1: 6 KiB, 2: 4 KiB) valid while v4 < v5, v6 time at the checkpoint')
        A('; s40 checkpoint (window index), s41 ws offset of its row, s[52:53] start time of this wave')
        A('L_ctl:')
        A('    s_memrealtime s[52:53]')
        A('    v_and_b32 v8, 3, v0')
        A('    v_lshlrev_b32 v8, 2, v8')
        A('    v_mov_b32 v5, 0')
        A('    v_mov_b32 v6, 0')
        A('    v_mov_b32 v12, 1')
        A('    s_waitcnt lgkmcnt(0)')
        A('    s_barrier')
        A('    s_mov_b32 s40, %d' % (first or ck))
        A('    s_mov_b32 s41, %d' % (0x100000 if stamp else 0))
        A('    s_and_b32 s46, s48, 7')
        A('    s_lshr_b32 s39, s48, 7')
        A('    s_lshl_b32 s39, s39, 3')
        A('    s_or_b32 s39, s39, s46')
        A('    s_lshl_b32 s39, s39, 8', 'slot of a publishing workgroup')
        A('    s_and_b32 s47, s48, 0x%x' % (0x78 if nb == 16 else 0xf8), '0: this workgroup publishes')
        A('    s_mov_b64 exec, 15')
        def poll(label, thr, stampit):
            A(label + ':')
            A('    s_sleep %d' % slp, 'poll own workgroup progress in LDS')
            A('    ds_read_b32 v4, v8 offset:%d' % CTL)
            A('    s_waitcnt lgkmcnt(0)')
            A('    v_cmp_lt_u32 vcc, v4, v5')
            A('    s_nop 1')
            A('    v_cndmask_b32 v7, 0, v12, vcc')
            A('    v_cmp_gt_u32 vcc, %s, v4' % thr, 'waves that have not reached it yet')
            A('    ds_write_b32 v8, v7 offset:%d' % (CTL+16), 'mode[w]')
            if stampit:
                A('    s_andn2_b32 s56, exec_lo, vcc_lo')
                A('    s_and_b32 s56, s56, s42', 'waves that just passed the checkpoint')
                A('    s_cbranch_scc0 ' + label)
                A('    s_memrealtime s[54:55]')
                A('    s_mov_b32 s42, vcc_lo')
                A('    s_waitcnt lgkmcnt(0)')
                A('    s_sub_u32 s46, s54, s52')
                A('    v_mov_b32 v9, s46')
                A('    v_cndmask_b32 v6, v6, v9, s[56:57]')
            A('    s_cbranch_vccnz ' + label)
        A('    s_mov_b32 s57, 0')
        A('L_cnext:')
        A('    s_mov_b32 s42, 15')
        poll('L_cp1', 's40', True)
        A('    s_cmp_lg_u32 s47, 0')
        A('    s_cbranch_scc1 L_cnb')
        A('    s_nop 1')
        A('    v_add_u32_dpp v10, v6, v6 quad_perm:[1,0,3,2] row_mask:0xf bank_mask:0xf')
        A('    s_add_u32 s46, s41, s39')
        A('    v_mov_b32 v9, s46')
        A('    v_add_u32_dpp v10, v10, v10 quad_perm:[2,3,0,1] row_mask:0xf bank_mask:0xf')
        A('    v_mov_b32 v11, s53')
        A('    v_lshrrev_b32 v10, 2, v10', 'mean over the 4 waves')
        A('    v_add_u32 v10, s52, v10')
        A('    s_mov_b64 exec, 1')
        A('    global_store_dwordx2 v9, v[10:11], s[50:51] sc0 sc1')
        A('    s_mov_b64 exec, 15')
        A('L_cnb:')
        if vt:
            A('    s_cmp_lg_u32 s40, %d' % vt)
            A('    s_cbranch_scc1 L_cnv')
            A('    v_mov_b32 v9, s29')
            A('    global_load_dword v13, v9, s[8:9] nt', 'touch the V range early: its translation is ready at the switch')
            A('L_cnv:')
        A('    s_add_u32 s38, s40, %d' % dly)
        poll('L_cp2', 's38', False)
        A('    s_add_u32 s60, s50, s41')
        A('    s_addc_u32 s61, s51, 0')
        for j in range(nb):
            A('    s_load_dwordx2 s[%d:%d], s[60:61], %d' % (64+2*j, 65+2*j, j*256))
        A('    s_mov_b32 s44, 0', 'sum of published times')
        A('    s_mov_b32 s46, 0', 'number of valid entries')
        A('    s_waitcnt lgkmcnt(0)')
        for j in range(nb):
            A('    s_sub_u32 s58, s%d, s52' % (64+2*j), 'valid iff written after this wave started' if j == 0 else None)
            A('    s_xor_b32 s59, s%d, s53' % (65+2*j))
            A('    s_cselect_b32 s58, -1, s58')
            A('    s_cmp_lt_u32 s58, 20000')
            A('    s_cselect_b32 s58, s58, 0')
            A('    s_addc_u32 s46, s46, 0')
            A('    s_add_u32 s44, s44, s58')
        A('    v_mul_u32_u24 v9, s46, v6')
        A('    v_subrev_u32 v9, s44, v9', 'count * lag of each wave')
        A('    v_mov_b32 v7, 0')
        for t_, n in zip(th, nf):
            A('    s_mul_i32 s59, s46, %d' % t_)
            A('    v_cmp_lt_i32 vcc, s59, v9')
            A('    s_nop 1')
            A('    v_cndmask_b32 v7, v7, %d, vcc' % n)
        if sl:
            A('    v_mov_b32 v12, 1')
            for t_, n in zip(sth, ns):
                A('    s_mul_i32 s59, s46, %d' % (-t_))
                A('    v_cmp_gt_i32 vcc, s59, v9')
                A('    s_nop 1')
                A('    v_cndmask_b32 v7, v7, %d, vcc' % n)
                A('    v_cndmask_b32 v12, v12, 2, vcc')
        A('    v_add_u32 v5, v4, v7', 'mode holds for the next 0..%d windows' % max(nf))
        A('    s_add_u32 s40, s40, %d' % ck)
        A('    s_add_u32 s41, s41, 4096')
        A('    s_cmp_le_u32 s40, %d' % last)
        A('    s_cbranch_scc1 L_cnext')
        A('    v_cmp_lt_u32 vcc, v4, v5')
        A('    s_nop 1')
        A('    v_cndmask_b32 v7, 0, v12, vcc')
        if sl: A('    v_and_b32 v7, 1, v7')
        A('    ds_write_b32 v8, v7 offset:%d' % (CTL+16))
        A('    s_endpgm')
        assert (last + dly) <= 32 + 2*nit - tn - 1
    elif ctl:
        A('; ---------------- wave 4: progress balancing (performance only) ----------------')
        A('; s40 checkpoint (sum of the 4 progress words), s41 ws offset of its row, s42 point where the deeper queue ends,')
        A('; s[52:53] start time of this wave, s45 time at which this workgroup passed the checkpoint')
        A('L_ctl:')
        A('    s_memrealtime s[52:53]')
        A('    s_waitcnt lgkmcnt(0)')
        A('    s_barrier')
        A('    s_mov_b32 s40, %d' % (ck*4))
        A('    s_mov_b32 s41, %d' % (0x100000 if stamp else 0))
        A('    s_mov_b32 s42, -1')
        A('    s_and_b32 s46, s48, 7')
        A('    s_lshr_b32 s39, s48, 7')
        A('    s_lshl_b32 s39, s39, 3')
        A('    s_or_b32 s39, s39, s46')
        A('    s_lshl_b32 s39, s39, 8', 'slot of a publishing workgroup')
        A('    s_and_b32 s47, s48, 0x78', '0: this workgroup publishes')
        A('    s_mov_b64 exec, 1')
        def poll(label):
            A(label + ':')
            A('    s_sleep %d' % slp, 'poll own workgroup progress in LDS')
            A('    ds_read_b128 v[4:7], v%d offset:%d' % (vZ, CTL))
            A('    s_waitcnt lgkmcnt(0)')
            A('    v_add_u32 v4, v4, v5')
            A('    v_add3_u32 v4, v4, v6, v7')
            A('    s_nop 0')
            A('    v_readfirstlane_b32 s43, v4')
            A('    s_cmp_ge_u32 s43, s42')
            A('    s_cbranch_scc0 %s_nr' % label)
            A('    ds_write_b32 v%d, v%d offset:%d' % (vZ, vZ, CTL+16), 'mode = 0')
            A('    s_mov_b32 s42, -1')
            A(label + '_nr:')
            A('    s_cmp_ge_u32 s43, s38')
            A('    s_cbranch_scc0 ' + label)
        A('L_cnext:')
        A('    s_mov_b32 s44, 0')
        A('    s_sub_u32 s38, s40, 3')
        poll('L_cp1')
        A('    s_memrealtime s[54:55]')
        A('    s_waitcnt lgkmcnt(0)')
        A('    s_sub_u32 s46, s54, s52')
        A('    s_add_u32 s44, s44, s46')
        A('    s_add_u32 s38, s38, 1')
        A('    s_cmp_le_u32 s38, s40')
        A('    s_cbranch_scc1 L_cp1')
        A('    s_lshr_b32 s44, s44, 2', 'mean over the 4 waves')
        A('    s_add_u32 s45, s44, s52')
        A('    s_cmp_lg_u32 s47, 0')
        A('    s_cbranch_scc1 L_cnb')
        A('    s_add_u32 s46, s41, s39')
        A('    v_mov_b32 v9, s46')
        A('    v_mov_b32 v10, s45')
        A('    v_mov_b32 v11, s53')
        A('    global_store_dwordx2 v9, v[10:11], s[50:51] sc0 sc1')
        A('L_cnb:')
        A('    s_add_u32 s38, s40, %d' % (dly*4))
        poll('L_cp2')
        A('    s_add_u32 s60, s50, s41')
        A('    s_addc_u32 s61, s51, 0')
        for j in range(16):
            A('    s_load_dwordx2 s[%d:%d], s[60:61], %d' % (64+2*j, 65+2*j, j*256))
        A('    s_mov_b32 s44, 0', 'sum of lags')
        A('    s_mov_b32 s46, 0', 'number of valid entries')
        A('    s_waitcnt lgkmcnt(0)')
        for j in range(16):
            A('    s_sub_u32 s58, s%d, s52' % (64+2*j), 'valid iff written after this wave started' if j == 0 else None)
            A('    s_xor_b32 s59, s%d, s53' % (65+2*j))
            A('    s_cselect_b32 s58, -1, s58')
            A('    s_sub_u32 s59, s45, s%d' % (64+2*j))
            A('    s_cmp_lt_u32 s58, 20000')
            A('    s_cselect_b32 s59, s59, 0')
            A('    s_addc_u32 s46, s46, 0')
            A('    s_add_u32 s44, s44, s59')
        A('    s_mov_b32 s58, 0')
        for t_, n in zip(th, nf):
            A('    s_mul_i32 s59, s46, %d' % t_)
            A('    s_cmp_gt_i32 s44, s59')
            A('    s_cselect_b32 s58, %d, s58' % (n*4))
        A('    s_cmp_eq_u32 s58, 0')
        A('    s_cbranch_scc1 L_cnof')
        A('    s_add_u32 s42, s43, s58')
        A('    v_mov_b32 v11, 1')
        A('    ds_write_b32 v%d, v11 offset:%d' % (vZ, CTL+16), 'mode = 1 for the next windows')
        A('L_cnof:')
        A('    s_add_u32 s40, s40, %d' % (ck*4))
        A('    s_add_u32 s41, s41, 4096')
        A('    s_cmp_le_u32 s40, %d' % (last*4))
        A('    s_cbranch_scc1 L_cnext')
        A('    s_endpgm')
        assert (last + dly) <= 32 + 2*nit - tn - 1
    A('.section .rodata,"a"'); A('.p2align 6'); A('.amdhsa_kernel %s_kernel' % NAME)
    A('  .amdhsa_next_free_vgpr %d' % nv)
    A('  .amdhsa_next_free_sgpr 96')
    A('  .amdhsa_accum_offset %d' % ((nv+3)//4*4))
    A('  .amdhsa_group_segment_fixed_size 0'); A('  .amdhsa_kernarg_size 48'); A('  .amdhsa_user_sgpr_count 2')
    A('  .amdhsa_user_sgpr_kernarg_segment_ptr 1'); A('  .amdhsa_system_sgpr_workgroup_id_x 1')
    A('  .amdhsa_float_denorm_mode_32 3')
    A('.end_amdhsa_kernel')
    return '\n'.join(o) + '\n'

if __name__ == '__main__':
    import build
    args = []
    for spec in sys.argv[1:]:
        kv = dict(x.split('=') for x in spec.split(','))
        fn = 'g5_' + spec.replace('=', '').replace(',', '_').replace('.', '-') + '.s'
        kw = {}
        for k, v in kv.items():
            kw[k] = tuple(int(x) for x in v.split('.')) if k in ('th', 'nf', 'ps', 'wb', 'ib', 'sth', 'ns') else int(v)
        open(fn, 'w').write(gen(**kw))
        args.append(build.build(fn))
    open('args.txt', 'w').write(' '.join(args))
    open('names.txt', 'w').write(' '.join(a.split(':')[0][3:-3] for a in args))
    print(' '.join('"dev/%s",' % a.split(':')[0] for a in args))
```
